```python
import torch

def _softmax(x, axis=-1):
    return torch.softmax(x, dim=axis)
def _gelu(x):
    return torch.nn.functional.gelu(x, approximate="tanh")
def _silu(x):
    return torch.nn.functional.silu(x)
def _sigmoid(x):
    return torch.sigmoid(x)
def _layernorm(x, axis=-1, eps=1e-5):
    m = x.mean(dim=axis, keepdim=True)
    v = x.var(dim=axis, keepdim=True, unbiased=False)
    return (x - m) / torch.sqrt(v + eps)
def _scatter_add(tgt, idx, src, axis=0):
    return tgt.clone().index_add_(axis, idx, src)
def _segment_sum(src, seg, n):
    out = torch.zeros((n,) + src.shape[1:], dtype=src.dtype)
    return out.index_add_(0, seg, src)
def _pad(x, pw):
    flat = tuple(v for pair in reversed(pw) for v in pair)
    return torch.nn.functional.pad(x, flat)

kernel_name = 'recurrent_scan__spectral_gfnet__mixer_channel_mlp__prompt'

def setup_inputs():

    _w = (lambda a: (lambda t: t.to(torch.bfloat16) if t.is_floating_point() else t)(torch.as_tensor(a)))
    def _A_setup():
        B, S, D = 1, 2048, 640
        Df = D // 2 + 1
        return {
            "x": _w((lambda *s: torch.randn(*s, dtype=torch.bfloat16) * 0.05)(B, S, D)),
            "w_r": _w((lambda *s: torch.randn(*s, dtype=torch.bfloat16) * 0.8)(S, Df) * 0.02),
            "w_i": _w((lambda *s: torch.randn(*s, dtype=torch.bfloat16) * 0.8)(S, Df) * 0.02),
        }
    _A_in = _A_setup()

    def _B_setup():
        B, S, D, F = 1, 2048, 640, 1536
        return {
            "x": _w((lambda *s: torch.randn(*s, dtype=torch.bfloat16) * 0.05)(B, S, D)),
            "w1": _w((lambda *s: torch.randn(*s, dtype=torch.bfloat16) * 3.2)(D, F) * (D ** -0.5)),
            "b1": _w((lambda *s: torch.randn(*s, dtype=torch.bfloat16) * 1.6)(F)),
            "w2": _w((lambda *s: torch.randn(*s, dtype=torch.bfloat16) * 0.2)(F, D) * (F ** -0.5)),
            "b2": _w((lambda *s: torch.randn(*s, dtype=torch.bfloat16) * 0.2)(D)),
        }
    _B_in = _B_setup()

    return {
        "A_x": _A_in["x"],
        "A_w_r": _A_in["w_r"],
        "A_w_i": _A_in["w_i"],
        "B_x": _B_in["x"],
        "B_w1": _B_in["w1"],
        "B_b1": _B_in["b1"],
        "B_w2": _B_in["w2"],
        "B_b2": _B_in["b2"],
    }

def reference(A_x, A_w_r, A_w_i, B_x, B_w1, B_b1, B_w2, B_b2):
    def _A_ref(x, w_r, w_i):
        B, S, D = x.shape
        X = (lambda x, axes=(-2,-1): torch.fft.rfft2(x.float(), dim=axes))(x, axes=(-2, -1))
        W = w_r + 1j * w_i
        X = X * W
        y = (lambda x, s, axes=(-2,-1): torch.fft.irfft2(x, s=s, dim=axes).to(torch.bfloat16))(X, (S, D), axes=(-2, -1))
        return y

    def _B_ref(x, w1, b1, w2, b2):
        y = _layernorm(x, axis=-1)
        h = _gelu(torch.einsum("bsd,df->bsf", y, w1) + b1)
        return torch.einsum("bsf,fd->bsd", h, w2) + b2

    x = A_x
    xn = _layernorm(x, axis=-1)
    s = _A_ref(xn, A_w_r, A_w_i)
    g = _silu(_B_ref(xn, B_w1, B_b1, B_w2, B_b2))
    return x + s * g
```

```python
STAMP_OFF = 128 << 20

class K:
    def __init__(self, name, grid, block, lds=0, vgpr=256, sgpr=96, agpr=0):
        self.name = name; self.grid = grid; self.block = block; self.lds = lds
        self.vgpr = vgpr; self.sgpr = sgpr; self.agpr = agpr
        self.lines = []
        self.nlabel = 0
    def __call__(self, s):
        for l in s.strip("\n").split("\n"):
            self.lines.append("    " + l.strip() if not l.strip().endswith(":") else l.strip())
    def label(self, base="L"):
        self.nlabel += 1
        return "%s_%s_%d" % (base, self.name[:-7], self.nlabel)
    def srd(self, d, base, nbytes):
        self("s_mov_b32 s%d, s%d\ns_and_b32 s%d, s%d, 0xffff\ns_mov_b32 s%d, 0x%x\ns_mov_b32 s%d, 0x00020000" % (d, base, d + 1, base + 1, d + 2, nbytes, d + 3))
    def text(self):
        acc = (self.vgpr + 3) // 4 * 4
        nfv = acc + self.agpr if self.agpr else self.vgpr
        body = "\n".join(self.lines)
        return f""".text
.globl {self.name}
.p2align 8
.type {self.name},@function
{self.name}:
{body}
.section .rodata,"a"
.p2align 6
.amdhsa_kernel {self.name}
  .amdhsa_next_free_vgpr {nfv}
  .amdhsa_next_free_sgpr {self.sgpr}
  .amdhsa_accum_offset {acc}
  .amdhsa_group_segment_fixed_size 0
  .amdhsa_kernarg_size 88
  .amdhsa_user_sgpr_count 2
  .amdhsa_user_sgpr_kernarg_segment_ptr 1
  .amdhsa_system_sgpr_workgroup_id_x 1
  .amdhsa_float_denorm_mode_32 3
  .amdhsa_float_denorm_mode_16_64 3
.end_amdhsa_kernel
"""

def write(path, kernels, order=None, header=""):
    order = order or kernels
    out = []
    for l in header.strip("\n").split("\n"):
        if l.strip(): out.append("; " + l)
    for k in order:
        out.append("; @launch kernel=%s grid=(%d,1,1) block=(%d,1,1) lds=%d" % (k.name, k.grid, k.block, k.lds))
    out.append('.amdgcn_target "amdgcn-amd-amdhsa--gfx950"')
    for k in kernels:
        out.append(k.text())
    open(path, "w").write("\n".join(out))

def scrub_kernel(n=16384):
    k = K("scrub_kernel", 512, 256, vgpr=32, sgpr=48)
    k("v_mov_b32 v2, 1.0")
    k(".rept %d\nv_fma_f32 v4, v2, v2, v4\nv_fma_f32 v5, v2, v2, v5\n.endr" % (n // 2))
    k("s_endpgm")
    return k

def stamp_store(k, idx, sregs, ws_lo, tmp_s=8, waves=4, vt=16):
    t = tmp_s
    k("s_add_u32 s%d, s%d, 0x%x\ns_addc_u32 s%d, s%d, 0" % (t + 4, ws_lo, STAMP_OFF + idx * 4096 * 64, t + 5, ws_lo + 1))
    k.srd(t, t + 4, 4096 * 64)
    k("s_waitcnt lgkmcnt(0)")
    k("s_mov_b64 exec, -1")
    k("v_lshrrev_b32 v%d, 6, v0\ns_mul_i32 s%d, s2, %d\nv_add_u32 v%d, s%d, v%d\nv_lshlrev_b32 v%d, 6, v%d" % (vt, t + 4, waves, vt, t + 4, vt, vt, vt))
    k("v_and_b32 v%d, 63, v0\nv_cmp_eq_u32 vcc, 0, v%d\ns_and_b64 exec, exec, vcc" % (vt + 1, vt + 1))
    for i, s in enumerate(sregs):
        k("v_mov_b32 v%d, s%d\nv_mov_b32 v%d, s%d" % (vt + 2, s, vt + 3, s + 1))
        k("buffer_store_dwordx2 v[%d:%d], v%d, s[%d:%d], 0 offen offset:%d" % (vt + 2, vt + 3, vt, t, t + 3, i * 8))
        k("s_nop 1")
```

```python
import re

_rng = re.compile(r"\b([vsa])\[(\d+):(\d+)\]|\b([vsa])(\d+)\b|\b(vcc|exec|m0|scc)\b")
TRANS = ("v_exp_f32", "v_log_f32", "v_rcp_f32", "v_rsq_f32", "v_sqrt_f32", "v_sin_f32", "v_cos_f32")

def regs_of(op):
    out = []
    for m in _rng.finditer(op):
        if m.group(1): out += [(m.group(1), i) for i in range(int(m.group(2)), int(m.group(3)) + 1)]
        elif m.group(4): out.append((m.group(4), int(m.group(5))))
        else: out.append((m.group(6), 0))
    return out

def split_ops(s):
    ops = []; depth = 0; cur = ""
    for ch in s:
        if ch == "[": depth += 1
        if ch == "]": depth -= 1
        if ch == "," and depth == 0: ops.append(cur.strip()); cur = ""
        else: cur += ch
    if cur.strip(): ops.append(cur.strip())
    return ops

class Ins:
    def __init__(self, line):
        self.line = line
        t = line.split(";")[0].strip()
        self.op = t.split()[0] if t else ""
        rest = t[len(self.op):].strip()
        ops = split_ops(rest)
        self.dpp = "_dpp" in self.op or "quad_perm" in rest or "row_" in rest
        op = self.op
        self.kind = "other"; self.dst = []; self.src = []; self.srcc = []; self.ab = []; self.wide_store = []
        self.lds_dma = False
        if op.startswith("v_mfma"):
            self.kind = "mfma"; self.dst = regs_of(ops[0]); self.ab = regs_of(ops[1]) + regs_of(ops[2]); self.srcc = regs_of(ops[3].split()[0])
            self.src = self.ab + self.srcc
            self.passes = 8 if "32x32" in op else 4
        elif op.startswith("v_"):
            self.kind = "valu"
            nd = 1
            if op.startswith(("v_add_co", "v_sub_co", "v_addc_co", "v_subb_co", "v_subrev_co", "v_mad_u64")): nd = 2
            self.dst = sum((regs_of(o) for o in ops[:nd]), [])
            last = [o.split(" quad_perm")[0].split(" row_")[0].split(" op_sel")[0].split(" neg_")[0].split(" dst_sel")[0].split(" mul:")[0].split(" clamp")[0].split(" bitop3")[0] for o in ops[nd:]]
            self.src = sum((regs_of(o) for o in last), [])
            if op.startswith(("v_fmac", "v_dot2c", "v_permlane", "v_writelane", "v_pk_fmac")) or self.dpp: self.src += self.dst
            if op.startswith("v_permlane"): self.dst = self.dst + regs_of(ops[1])
            if op.startswith("v_cndmask") and len(ops) == 3: self.src.append(("vcc", 0))
        elif op.startswith("ds_"):
            self.kind = "ds"
            o = [x.split(" offset")[0] for x in ops]
            if op.startswith(("ds_read", "ds_bpermute", "ds_permute", "ds_swizzle")) or "_rtn" in op:
                self.dst = regs_of(o[0]); self.src = sum((regs_of(x) for x in o[1:]), [])
            else: self.src = sum((regs_of(x) for x in o), [])
        elif op.startswith(("buffer_", "global_")):
            self.kind = "vmem"
            o = [x.split(" offen")[0].split(" offset")[0].split(" sc")[0].split(" lds")[0].split(" nt")[0] for x in ops]
            if re.search(r"\blds\b", rest):
                self.lds_dma = True; self.src = sum((regs_of(x) for x in o), []) + [("m0", 0)]
            elif "load" in op:
                self.dst = regs_of(o[0]); self.src = sum((regs_of(x) for x in o[1:]), [])
            else:
                self.src = sum((regs_of(x) for x in o), [])
                if op.endswith(("x3", "x4")):
                    self.wide_store = regs_of(o[0]) if op.startswith("buffer") else regs_of(o[1])
        elif op.startswith("s_"):
            self.kind = "salu"
            if op.startswith(("s_nop", "s_waitcnt", "s_barrier", "s_branch", "s_cbranch", "s_endpgm", "s_sleep", "s_setprio", "s_cmp")):
                self.src = sum((regs_of(x) for x in ops), []) if op.startswith("s_cmp") else []
            else:
                self.dst = regs_of(ops[0]) if ops else []; self.src = sum((regs_of(x) for x in ops[1:]), [])
        self.states = 1
        if op == "s_nop": self.states = int(rest, 0) + 1
        self.trans = op.startswith(TRANS)
        self.dot = op.startswith("v_dot")

def need(p, c):
    n = 0
    pd = set(p.dst); cs = set(c.src); cd = set(c.dst)
    if p.kind == "valu":
        vd = {r for r in pd if r[0] in "va" and r[0] != "vcc"}
        sd = {r for r in pd if r[0] in ("s", "vcc")}
        if c.kind == "mfma" and vd & cs: n = max(n, 3 if p.dot else 2)
        if c.kind == "valu":
            if p.trans and not c.trans and vd & cs: n = max(n, 1)
            if c.op.startswith(("v_readlane", "v_readfirstlane")) and vd & cs: n = max(n, 1)
            if c.op.startswith("v_permlane") and vd & cs: n = max(n, 2)
            if c.dpp and vd & cs: n = max(n, 2)
            if sd & cs: n = max(n, 4 if c.op.startswith(("v_readlane", "v_writelane")) else 2)
            if p.dot and (vd & (cs | cd)):
                if not (c.op == p.op and not (vd & set(c.src[:-len(c.dst)] if c.op.startswith("v_dot2c") else c.src[:2]))): n = max(n, 3)
            if "sdwa" in p.op and vd & (cs | cd): n = max(n, 1)
        if c.kind in ("vmem", "ds") and p.dot and vd & cs: n = max(n, 3)
        if c.kind == "vmem" and sd & cs: n = max(n, 5)
        if c.kind == "salu" and sd & cs: n = max(n, 1)
        if c.op.startswith("s_cbranch_vcc") and ("vcc", 0) in pd: n = max(n, 0)
    if p.kind == "mfma":
        big = {4: 8, 8: 12}[p.passes]; ov = {4: 6, 8: 10}[p.passes]; war = {4: 3, 8: 7}[p.passes]
        if c.kind == "mfma":
            if pd & set(c.ab): n = max(n, big)
            if pd & set(c.srcc) and not (p.dst == c.srcc and p.passes == c.passes): n = max(n, ov)
            if pd & cd and not (pd & set(c.srcc)): n = max(n, ov)
        elif c.kind in ("valu", "vmem", "ds"):
            if pd & (cs | cd): n = max(n, big)
            if c.kind == "valu" and set(p.srcc) & cd: n = max(n, war)
    if p.kind == "vmem" and p.wide_store and set(p.wide_store) & cd:
        n = max(n, 2 if c.kind == "valu" else 1)
    if p.kind == "salu" and ("m0", 0) in pd and c.lds_dma: n = max(n, 1)
    return n

def fix(lines):
    out = []; hist = []
    added = 0
    for l in lines:
        t = l.split(";")[0].strip()
        if not t or t.endswith(":") or t.startswith("."):
            out.append(l); continue
        c = Ins(l)
        dist = 0; req = 0
        for p in reversed(hist):
            if dist >= 13: break
            r = need(p, c) - dist
            req = max(req, r)
            dist += p.states
        if req > 0:
            nop = Ins("s_nop %d" % (req - 1))
            out.append("    s_nop %d" % (req - 1)); hist.append(nop); added += 1
        out.append(l); hist.append(c)
        if len(hist) > 40: hist = hist[-20:]
    return out
```

```python
import sys, struct
sys.path.insert(0, "tools")
from asmlib import *
import hz

MB = 1 << 20
X1_OFF = 0
WP_OFF = 320 * 8192
Y_OFF = WP_OFF + 321 * 8192
H_OFF = Y_OFF + 320 * 8192
P_OFF = H_OFF + 2048 * 1536 * 2
WS_USED = P_OFF + 3 * 2621440
STAMPS = False

def f2u(f): return struct.unpack("<I", struct.pack("<f", f))[0]
def lit(f): return "0x%08x" % f2u(f)

class RA:
    def __init__(self, start=1): self.n = start
    def get(self, n=1, al=1):
        self.n = (self.n + al - 1) // al * al
        r = self.n; self.n += n
        assert self.n <= 256, "out of vgprs"
        return r
def vr(b, n): return "v[%d:%d]" % (b, b + n - 1)

S_WAVE, S_XCD, S_I = 3, 4, 5
SRD_X, SRD_WS, SRD_A, SRD_B, SRD_OUT, SRD_C = 8, 12, 16, 20, 24, 28
P_X, P_WR, P_WI, P_W1, P_B1, P_W2, P_B2, P_OUT, P_DBG, P_WS = 64, 66, 68, 72, 74, 76, 78, 80, 82, 84
MF = "v_mfma_f32_32x32x16_bf16"

def stamp(k, n):
    if STAMPS: k("s_memrealtime s[%d:%d]" % (86 + 2 * n, 87 + 2 * n))
def stamps_out(k, idx, n):
    if STAMPS:
        k("s_waitcnt vmcnt(0) lgkmcnt(0)")
        k("s_memrealtime s[%d:%d]" % (86 + 2 * n, 87 + 2 * n))
        stamp_store(k, idx, [86 + 2 * i for i in range(n + 1)], P_WS, tmp_s=32, waves=8, vt=4)

def prologue(k, done):
    if STAMPS:
        for i in range(1, 8): k("s_mov_b64 s[%d:%d], 0" % (86 + 2 * i, 87 + 2 * i))
    stamp(k, 0)
    k(f"s_cmp_ge_u32 s2, 256\ns_cbranch_scc1 {done}")
    k("s_load_dwordx16 s[64:79], s[0:1], 0\ns_load_dwordx4 s[80:83], s[0:1], 64\ns_load_dwordx2 s[84:85], s[0:1], 80")
    k("v_lshrrev_b32 v1, 6, v0")
    k(f"v_readfirstlane_b32 s{S_WAVE}, v1")
    k(f"s_and_b32 s{S_XCD}, s2, 7\ns_lshr_b32 s{S_I}, s2, 3")

def sincos_pack(k, ang, t0, t1, dR, dI):
    k(f"v_fract_f32 v{ang}, v{ang}")
    k(f"v_cos_f32 v{t0}, v{ang}\nv_sin_f32 v{t1}, v{ang}")
    k(f"v_cvt_pk_bf16_f32 v{dR}, v{t0}, v{t1}\nv_cvt_pk_bf16_f32 v{dI}, -v{t1}, v{t0}")

def idx16(i): return 8 * (i >> 2) + (i & 3)

def gen_m32(k, vLf, vHf, T, MR, MI):
    a, b, ang, t0, t1 = T, T + 1, T + 2, T + 3, T + 4
    k(f"v_mul_f32 v{a}, {lit(1/32)}, v{vLf}")
    k(f"v_mul_f32 v{b}, v{a}, v{vHf}\nv_mul_f32 v{b}, 4.0, v{b}")
    for i in range(16):
        k(f"v_fmamk_f32 v{ang}, v{a}, {lit(idx16(i))}, v{b}")
        sincos_pack(k, ang, t0, t1, MR + i, MI + i)

def gen_tw(k, vKf, vHf, T, N, TC, TS, scale=None):
    a, b, ang = T, T + 1, T + 2
    k(f"v_mul_f32 v{a}, {lit(1/N)}, v{vKf}")
    k(f"v_mul_f32 v{b}, v{a}, v{vHf}\nv_mul_f32 v{b}, 4.0, v{b}")
    for i in range(16):
        k(f"v_fmamk_f32 v{ang}, v{a}, {lit(idx16(i))}, v{b}")
        k(f"v_cos_f32 v{TC+i}, v{ang}\nv_sin_f32 v{TS+i}, v{ang}")
    if scale is not None:
        for i in range(16):
            k(f"v_mul_f32 v{TC+i}, {lit(scale)}, v{TC+i}\nv_mul_f32 v{TS+i}, {lit(scale)}, v{TS+i}")

def gen_k1f(k, vL, vK1f, T):
    k(f"v_bfe_u32 v{T}, v{vL}, 2, 1\nv_mul_u32_u24 v{T}, 10, v{T}")
    k(f"v_lshrrev_b32 v{T+1}, 3, v{vL}\nv_lshl_add_u32 v{T}, v{T+1}, 2, v{T}")
    k(f"v_and_b32 v{T+1}, 3, v{vL}\nv_add_u32 v{T}, v{T}, v{T+1}\nv_cvt_f32_u32 v{vK1f}, v{T}")

def gen_m20(k, vK1f, vHf, T, MR, MI):
    a, b, ang, t0, t1 = T, T + 1, T + 2, T + 3, T + 4
    k(f"v_mul_f32 v{a}, {lit(1/20)}, v{vK1f}")
    k(f"v_mul_f32 v{b}, v{vK1f}, v{vHf}\nv_mul_f32 v{b}, 0.5, v{b}")
    for i in range(10):
        k(f"v_fmamk_f32 v{ang}, v{a}, {lit(i)}, v{b}")
        sincos_pack(k, ang, t0, t1, MR + i, MI + i)
    for i in (10, 11): k(f"v_mov_b32 v{MR+i}, 0\nv_mov_b32 v{MI+i}, 0")

def lane_vars(k, ra):
    vLane = ra.get(); vL = ra.get(); vH = ra.get(); vLf = ra.get(); vHf = ra.get()
    k(f"v_and_b32 v{vLane}, 63, v0\nv_and_b32 v{vL}, 31, v0\nv_bfe_u32 v{vH}, v0, 5, 1")
    k(f"v_cvt_f32_u32 v{vLf}, v{vL}\nv_cvt_f32_u32 v{vHf}, v{vH}")
    return vLane, vL, vH, vLf, vHf

def mm(k, D, A, B, nsteps):
    for q in range(nsteps):
        c = "0" if q == 0 else vr(D, 16)
        k(f"{MF} {vr(D,16)}, {vr(A+4*q,4)}, {vr(B+4*q,4)}, {c}")

def twiddle_pack(k, DR, DI, TC, TS, PK, T, inv):
    for i in range(16):
        a, b = T + 2 * (i & 1), T + 2 * (i & 1) + 1
        k(f"v_mul_f32 v{a}, v{DR+i}, v{TC+i}\nv_mul_f32 v{b}, v{DI+i}, v{TC+i}")
        if not inv:
            k(f"v_fmac_f32 v{a}, v{DI+i}, v{TS+i}\nv_fma_f32 v{b}, -v{DR+i}, v{TS+i}, v{b}")
            k(f"v_cvt_pk_bf16_f32 v{PK+i}, v{a}, v{b}")
        else:
            k(f"v_fma_f32 v{a}, -v{DI+i}, v{TS+i}, v{a}\nv_fmac_f32 v{b}, v{DR+i}, v{TS+i}")
            k(f"v_cvt_pk_bf16_f32 v{PK+i}, v{b}, v{a}")

def wave_allreduce(k, regs, tmps):
    for dpp in ("quad_perm:[1,0,3,2]", "quad_perm:[2,3,0,1]", "row_half_mirror", "row_mirror"):
        for r in regs: k(f"v_add_f32_dpp v{r}, v{r}, v{r} {dpp} row_mask:0xf bank_mask:0xf")
    for sw in ("v_permlane16_swap_b32", "v_permlane32_swap_b32"):
        for r, t in zip(regs, tmps): k(f"v_mov_b32 v{t}, v{r}")
        for r, t in zip(regs, tmps): k(f"{sw} v{r}, v{t}")
        for r, t in zip(regs, tmps): k(f"v_add_f32 v{r}, v{r}, v{t}")

def bfround2(k, a, b, t):
    k(f"v_cvt_pk_bf16_f32 v{t}, v{a}, v{b}\nv_lshlrev_b32 v{a}, 16, v{t}\nv_and_b32 v{b}, 0xffff0000, v{t}")

T_STRIDE = 4160
WB = 41984
def role_F1(k, done):
    ra = RA(1)
    T = ra.get(10)
    vLane, vL, vH, vLf, vHf = lane_vars(k, ra)
    vK1f = ra.get(); vXo = ra.get(); vTw = ra.get(); vGo = ra.get(); vWa = ra.get()
    vCo = ra.get(5)
    X = ra.get(40, 4); Z = ra.get(24, 4)
    M20R = ra.get(12, 4); M20I = ra.get(12, 4); M32R = ra.get(16, 4); M32I = ra.get(16, 4)
    TC = ra.get(16); TS = ra.get(16)
    D = ra.get(64, 4)
    PK = X
    sQH, sMQ, sRow, sT0, sT1, sGB = 44, 45, 46, 47, 48, 49
    k(f"s_mov_b32 s{sQH}, s{S_XCD}\ns_sub_u32 s{sMQ}, s{S_I}, 24")
    k(f"s_lshl_b32 s{sRow}, s{sQH}, 8\ns_and_b32 s{sT0}, s{S_WAVE}, 1\ns_lshl_b32 s{sT0}, s{sT0}, 7\ns_add_u32 s{sRow}, s{sRow}, s{sT0}")
    k(f"s_lshl_b32 s{sT0}, s{sMQ}, 3\ns_add_u32 s{sRow}, s{sRow}, s{sT0}\ns_and_b32 s{sT0}, s{S_WAVE}, 6\ns_add_u32 s{sRow}, s{sRow}, s{sT0}")
    k(f"s_mul_i32 s{sRow}, s{sRow}, 1280\ns_add_u32 s{sT1}, s{sRow}, {64*1280}")
    k(f"v_mul_u32_u24 v{vXo}, 640, v{vH}\nv_lshl_add_u32 v{vXo}, v{vL}, 1, v{vXo}")
    k("s_waitcnt lgkmcnt(0)")
    k.srd(SRD_X, P_X, 2621440)
    for rr in range(2):
        for b in range(2):
            for i in range(10):
                k(f"buffer_load_short_d16_hi v{X+rr*20+b*10+i}, v{vXo}, s[{SRD_X}:{SRD_X+3}], s{sRow if rr == 0 else sT1} offen offset:{b*1280+i*64}")
    k(f"s_cmp_lt_u32 s{S_WAVE}, 4\ns_cselect_b32 s{sT0}, s{P_WR}, s{P_WI}\ns_cselect_b32 s{sT1}, s{P_WR+1}, s{P_WI+1}")
    k.srd(SRD_A, sT0, 2048 * 642)
    k.srd(SRD_WS, P_WS, WS_USED)
    k(f"s_lshl_b32 s{sT0}, s{sQH}, 7\ns_and_b32 s{sT1}, s{S_WAVE}, 1\ns_lshl_b32 s{sT1}, s{sT1}, 6\ns_add_u32 s{sT0}, s{sT0}, s{sT1}")
    k(f"s_lshl_b32 s{sT1}, s{sMQ}, 2\ns_add_u32 s{sT0}, s{sT0}, s{sT1}\ns_and_b32 s{sT1}, s{S_WAVE}, 2\ns_lshl_b32 s{sT1}, s{sT1}, 9\ns_add_u32 s{sT0}, s{sT0}, s{sT1}")
    k(f"s_mul_i32 s{sT0}, s{sT0}, 642")
    k(f"s_mul_i32 s{sT1}, s{S_WAVE}, 6144\ns_add_u32 s{sT1}, s{sT1}, {WB}")
    k(f"v_lshlrev_b32 v{T}, 4, v{vLane}")
    for rr in range(2):
        k(f"s_add_u32 m0, s{sT1}, {rr*3072}")
        for j in range(3):
            k(f"buffer_load_dwordx4 v{T}, s[{SRD_A}:{SRD_A+3}], s{sT0} offen offset:{j*1024} lds")
        if rr == 0: k(f"s_add_u32 s{sT0}, s{sT0}, {32*642}")
    stamp(k, 1)
    gen_k1f(k, vL, vK1f, T)
    gen_m20(k, vK1f, vHf, T, M20R, M20I)
    gen_m32(k, vLf, vHf, T, M32R, M32I)
    gen_tw(k, vK1f, vHf, T, 640, TC, TS)
    for z in (Z + 10, Z + 11, Z + 22, Z + 23): k(f"v_mov_b32 v{z}, 0")
    k(f"s_lshr_b32 s{sT0}, s{S_WAVE}, 1\nv_bfe_u32 v{T}, v{vLane}, 1, 2\nv_xor_b32 v{T}, s{sT0}, v{T}\nv_lshlrev_b32 v{T}, 4, v{T}")
    k(f"v_lshl_add_u32 v{vTw}, v{vLane}, 6, v{T}\ns_and_b32 s{sT0}, s{S_WAVE}, 1\ns_lshl_b32 s{sT0}, s{sT0}, 3\nv_add_u32 v{vTw}, s{sT0}, v{vTw}")
    e, uv, tl = T, T + 1, T + 2
    k(f"v_and_b32 v{e}, 3, v0\nv_bfe_u32 v{uv}, v0, 2, 1\nv_lshrrev_b32 v{tl}, 3, v0")
    k(f"v_and_b32 v{T+3}, 7, v0\nv_lshlrev_b32 v{T+3}, 4, v{T+3}\nv_lshl_add_u32 v{vGo}, v{tl}, 13, v{T+3}")
    k(f"v_mul_u32_u24 v{vWa}, 12288, v{uv}\nv_mul_u32_u24 v{T+3}, 642, v{e}\nv_add_u32 v{vWa}, v{vWa}, v{T+3}\nv_lshl_add_u32 v{vWa}, v{tl}, 1, v{vWa}\nv_add_u32 v{vWa}, {WB}, v{vWa}")
    k(f"v_cmp_eq_u32 s[50:51], 1, v{uv}")
    for n in range(5):
        kk, t2, k10, ii = T + 3, T + 4, T + 5, T + 6
        k(f"v_add_u32 v{kk}, {64*n}, v{tl}\nv_sub_u32 v{t2}, 640, v{kk}")
        if n == 0:
            k(f"v_cmp_eq_u32 vcc, 0, v{kk}\nv_mov_b32 v{k10}, 320\nv_cndmask_b32 v{t2}, v{t2}, v{k10}, vcc")
        k(f"v_cndmask_b32 v{kk}, v{kk}, v{t2}, s[50:51]")
        k(f"v_mul_u32_u24 v{k10}, 6554, v{kk}\nv_lshrrev_b32 v{k10}, 16, v{k10}")
        k(f"v_mul_u32_u24 v{t2}, 10, v{k10}\nv_sub_u32 v{ii}, v{kk}, v{t2}\nv_mul_u32_u24 v{ii}, {T_STRIDE}, v{ii}")
        k(f"v_and_b32 v{t2}, 1, v{k10}\nv_lshlrev_b32 v{t2}, 5, v{t2}\nv_lshrrev_b32 v{k10}, 1, v{k10}\nv_add_u32 v{t2}, v{t2}, v{k10}")
        k(f"v_lshl_add_u32 v{ii}, v{t2}, 6, v{ii}\nv_bfe_u32 v{t2}, v{t2}, 1, 2\nv_xor_b32 v{t2}, v{t2}, v{e}\nv_lshl_add_u32 v{vCo+n}, v{t2}, 4, v{ii}")
    k(f"s_lshl_b32 s{sGB}, s{sQH}, 10\ns_lshl_b32 s{sT0}, s{sMQ}, 7\ns_add_u32 s{sGB}, s{sGB}, s{sT0}")
    stamp(k, 2)
    k("s_waitcnt vmcnt(6)")
    stamp(k, 3)
    S = D; Q = D + 4; TM = D + 8
    for r in range(4):
        k(f"v_add_f32 v{S+r}, v{X+10*r}, v{X+10*r+1}\nv_mul_f32 v{Q+r}, v{X+10*r}, v{X+10*r}")
    for i in range(1, 10):
        for r in range(4):
            if i > 1: k(f"v_add_f32 v{S+r}, v{S+r}, v{X+10*r+i}")
            k(f"v_fmac_f32 v{Q+r}, v{X+10*r+i}, v{X+10*r+i}")
    wave_allreduce(k, list(range(S, S + 8)), list(range(TM, TM + 8)))
    for r in range(4):
        k(f"v_mul_f32 v{S+r}, {lit(1/640)}, v{S+r}\nv_mul_f32 v{Q+r}, {lit(1/640)}, v{Q+r}")
    for r in range(4):
        k(f"v_fma_f32 v{Q+r}, -v{S+r}, v{S+r}, v{Q+r}\nv_max_f32 v{Q+r}, 0, v{Q+r}")
    for p in range(2):
        bfround2(k, S + 2 * p, S + 2 * p + 1, TM + p); bfround2(k, Q + 2 * p, Q + 2 * p + 1, TM + 2 + p)
    for r in range(4): k(f"v_add_f32 v{Q+r}, {lit(1e-5)}, v{Q+r}")
    for p in range(2): bfround2(k, Q + 2 * p, Q + 2 * p + 1, TM + p)
    for r in range(4): k(f"v_sqrt_f32 v{Q+r}, v{Q+r}")
    for p in range(2): bfround2(k, Q + 2 * p, Q + 2 * p + 1, TM + p)
    for r in range(4): k(f"v_rcp_f32 v{Q+r}, v{Q+r}")
    for p in range(2):
        for i in range(10):
            a, b = X + 20 * p + i, X + 20 * p + 10 + i
            k(f"v_sub_f32 v{a}, v{a}, v{S+2*p}\nv_sub_f32 v{b}, v{b}, v{S+2*p+1}")
            bfround2(k, a, b, TM + (i & 3))
            k(f"v_mul_f32 v{a}, v{a}, v{Q+2*p}\nv_mul_f32 v{b}, v{b}, v{Q+2*p+1}")
            k(f"v_cvt_pk_bf16_f32 v{Z+12*p+i}, v{a}, v{b}")
    for p in range(2):
        mm(k, D + 32 * p, Z + 12 * p, M20R, 3); mm(k, D + 32 * p + 16, Z + 12 * p, M20I, 3)
    for p in range(2):
        twiddle_pack(k, D + 32 * p, D + 32 * p + 16, TC, TS, PK + 16 * p, T, False)
        mm(k, D + 32 * p, PK + 16 * p, M32R, 4); mm(k, D + 32 * p + 16, PK + 16 * p, M32I, 4)
    for i in range(10):
        o = Z + 2 * i
        k(f"v_cvt_pk_bf16_f32 v{o}, v{D+i}, v{D+16+i}\nv_cvt_pk_bf16_f32 v{o+1}, v{D+32+i}, v{D+48+i}")
        k(f"ds_write_b64 v{vTw}, {vr(o,2)} offset:{i*T_STRIDE}")
    k("s_waitcnt vmcnt(0) lgkmcnt(0)\ns_barrier")
    stamp(k, 4)
    for n in range(5): k(f"ds_read_b128 {vr(D+4*n,4)}, v{vCo+n}")
    for n in range(5):
        k(f"s_add_u32 s{sT0}, s{sGB}, {X1_OFF + n*64*8192}\ns_waitcnt lgkmcnt({4-n})")
        k(f"buffer_store_dwordx4 {vr(D+4*n,4)}, v{vGo}, s[{SRD_WS}:{SRD_WS+3}], s{sT0} offen")
    stamp(k, 5)
    def wround(n, base):
        for r in range(4):
            k(f"ds_read_u16 v{base+r}, v{vWa} offset:{r*3072+n*128}")
            k(f"ds_read_u16 v{base+4+r}, v{vWa} offset:{r*3072+24576+n*128}")
        k("s_waitcnt lgkmcnt(0)")
        for r in range(4): k(f"v_lshl_or_b32 v{base+r}, v{base+4+r}, 16, v{base+r}")
        k(f"s_add_u32 s{sT0}, s{sGB}, {WP_OFF + n*64*8192}")
        k(f"buffer_store_dwordx4 {vr(base,4)}, v{vGo}, s[{SRD_WS}:{SRD_WS+3}], s{sT0} offen")
    for n in range(5): wround(n, D + 24 + 8 * n)
    l = k.label()
    k(f"s_cmp_lg_u32 s{S_WAVE}, 0\ns_cbranch_scc1 {l}\ns_mov_b64 exec, 0xff")
    wround(5, X)
    k(f"{l}:")
    stamps_out(k, 0, 6)
    k("s_endpgm")

def role_F2(k, done):
    ra = RA(1)
    T = ra.get(14, 2)
    vLane, vL, vH, vLf, vHf = lane_vars(k, ra)
    vA = ra.get()
    U = ra.get(16, 4); V = ra.get(16, 4); WL = ra.get(16, 4); WH = ra.get(16, 4)
    MR = ra.get(16, 4); MI = ra.get(16, 4); TC = ra.get(16); TS = ra.get(16); SN = ra.get(16); CS = ra.get(16)
    UR = ra.get(16, 4); UI = ra.get(16, 4); VR = ra.get(16, 4); VI = ra.get(16, 4)
    sT, sU, sV, sW, sT0, sSp = 44, 45, 46, 47, 48, 49
    k(f"s_lshl_b32 s{sT}, s{S_XCD}, 3\ns_add_u32 s{sT}, s{sT}, s{S_I}\ns_sub_u32 s{sT}, s{sT}, 24\ns_mul_i32 s{sT}, s{sT}, 5\ns_add_u32 s{sT}, s{sT}, s{S_WAVE}")
    ok = k.label()
    k(f"s_cmp_lt_u32 s{S_WAVE}, 5\ns_cbranch_scc1 {ok}\ns_cmp_lg_u32 s{sT}, 320\ns_cbranch_scc1 {done}")
    k(f"{ok}:")
    k(f"s_lshl_b32 s{sW}, s{sT}, 13\ns_mov_b32 s{sU}, s{sW}\ns_add_u32 s{sV}, s{sW}, 64\ns_mov_b32 s{sSp}, 0")
    k(f"s_cmp_eq_u32 s{sT}, 0\ns_cselect_b32 s{sV}, 0, s{sV}\ns_cselect_b32 s{sSp}, 1, s{sSp}")
    k(f"s_cmp_eq_u32 s{sT}, 320\ns_cselect_b32 s{sV}, 64, s{sV}\ns_cselect_b32 s{sU}, 64, s{sU}\ns_cselect_b32 s{sSp}, 1, s{sSp}")
    k(f"s_add_u32 s{sW}, s{sW}, {WP_OFF}")
    k(f"v_lshrrev_b32 v{T}, 2, v{vL}\nv_lshlrev_b32 v{T}, 7, v{T}\nv_lshl_add_u32 v{vA}, v{vH}, 10, v{T}\nv_and_b32 v{T}, 3, v{vL}\nv_lshl_add_u32 v{vA}, v{T}, 4, v{vA}")
    k("s_waitcnt lgkmcnt(0)")
    k.srd(SRD_WS, P_WS, WS_USED)
    ws = f"s[{SRD_WS}:{SRD_WS+3}]"
    def ld4(dst, sb, extra):
        for q in range(4):
            if q == 2: k(f"s_add_u32 s{sT0}, s{sb}, 4096")
            k(f"buffer_load_dwordx4 {vr(dst+4*q,4)}, v{vA}, {ws}, s{sb if q < 2 else sT0} offen offset:{(q&1)*2048+extra}")
    ld4(U, sU, 0); ld4(V, sV, 0); ld4(WL, sW, 0); ld4(WH, sW, 64)
    stamp(k, 1)
    gen_m32(k, vLf, vHf, T, MR, MI)
    gen_tw(k, vLf, vHf, T, 1024, TC, TS)
    k(f"v_mul_f32 v{T}, {lit(1/2048)}, v{vLf}\nv_fmamk_f32 v{T}, v{vHf}, {lit(1/16)}, v{T}")
    for i in range(16):
        k(f"v_add_f32 v{T+1}, {lit(idx16(i)/64)}, v{T}\nv_sin_f32 v{SN+i}, v{T+1}\nv_cos_f32 v{CS+i}, v{T+1}")
    stamp(k, 2)
    k("s_waitcnt vmcnt(12)")
    stamp(k, 3)
    mm(k, UR, U, MR, 4); mm(k, UI, U, MI, 4)
    k("s_waitcnt vmcnt(8)")
    for i in range(16): k(f"v_xor_b32 v{V+i}, 0x80000000, v{V+i}")
    mm(k, VR, V, MR, 4); mm(k, VI, V, MI, 4)
    twiddle_pack(k, UR, UI, TC, TS, U, T, False)
    mm(k, UR, MR, U, 4); mm(k, UI, MI, U, 4)
    twiddle_pack(k, VR, VI, TC, TS, V, T, False)
    mm(k, VR, MR, V, 4); mm(k, VI, MI, V, 4)
    k("s_waitcnt vmcnt(0)")
    for i in range(16):
        lr, li, hr, hi, ar, ai, gr, gi, a, b, c, d = [T + j for j in range(12)]
        k(f"v_lshlrev_b32 v{lr}, 16, v{WL+i}\nv_and_b32 v{li}, 0xffff0000, v{WL+i}\nv_lshlrev_b32 v{hr}, 16, v{WH+i}\nv_and_b32 v{hi}, 0xffff0000, v{WH+i}")
        k(f"v_add_f32 v{gr}, v{lr}, v{hr}\nv_add_f32 v{gi}, v{li}, v{hi}\nv_sub_f32 v{lr}, v{lr}, v{hr}\nv_sub_f32 v{li}, v{li}, v{hi}")
        k(f"v_fma_f32 v{ar}, -v{SN+i}, v{lr}, v{gr}\nv_fma_f32 v{ai}, -v{SN+i}, v{li}, v{gi}\nv_fmac_f32 v{gr}, v{SN+i}, v{lr}\nv_fmac_f32 v{gi}, v{SN+i}, v{li}")
        k(f"v_mul_f32 v{lr}, v{CS+i}, v{lr}\nv_mul_f32 v{li}, v{CS+i}, v{li}")
        br, bi = lr, li
        ur, ui, vr_, vi = UR + i, UI + i, VR + i, VI + i
        k(f"v_mul_f32 v{a}, v{ar}, v{ur}\nv_mul_f32 v{b}, v{ar}, v{ui}\nv_mul_f32 v{c}, v{bi}, v{ur}\nv_mul_f32 v{d}, v{bi}, v{ui}")
        k(f"v_fma_f32 v{a}, -v{ai}, v{ui}, v{a}\nv_fmac_f32 v{b}, v{ai}, v{ur}\nv_fmac_f32 v{c}, v{br}, v{ui}\nv_fma_f32 v{d}, -v{br}, v{ur}, v{d}")
        k(f"v_fma_f32 v{a}, -v{bi}, v{vr_}, v{a}\nv_fmac_f32 v{b}, v{br}, v{vr_}\nv_fmac_f32 v{c}, v{gr}, v{vr_}\nv_fmac_f32 v{d}, v{gr}, v{vi}")
        k(f"v_fma_f32 v{a}, -v{br}, v{vi}, v{a}\nv_fma_f32 v{b}, -v{bi}, v{vi}, v{b}\nv_fma_f32 v{c}, -v{gi}, v{vi}, v{c}\nv_fmac_f32 v{d}, v{gi}, v{vr_}")
        k(f"v_cvt_pk_bf16_f32 v{U+i}, v{b}, v{a}\nv_cvt_pk_bf16_f32 v{V+i}, v{d}, v{c}")
    stamp(k, 4)
    mm(k, UI, U, MR, 4); mm(k, UR, U, MI, 4)
    mm(k, VI, V, MR, 4); mm(k, VR, V, MI, 4)
    twiddle_pack(k, UR, UI, TC, TS, U, T, True)
    mm(k, UI, MR, U, 4); mm(k, UR, MI, U, 4)
    twiddle_pack(k, VR, VI, TC, TS, V, T, True)
    mm(k, VI, MR, V, 4); mm(k, VR, MI, V, 4)
    k(f"s_add_u32 s{sU}, s{sU}, {Y_OFF}\ns_add_u32 s{sV}, s{sV}, {Y_OFF}")
    def st4(src, sb):
        for q in range(4):
            if q == 2: k(f"s_add_u32 s{sT0}, s{sb}, 4096")
            k(f"buffer_store_dwordx4 {vr(src+4*q,4)}, v{vA}, {ws}, s{sb if q < 2 else sT0} offen offset:{(q&1)*2048}")
    sp = k.label(); fin = k.label()
    k(f"s_cmp_lg_u32 s{sSp}, 0\ns_cbranch_scc1 {sp}")
    for i in range(16): k(f"v_cvt_pk_bf16_f32 v{U+i}, v{UI+i}, v{UR+i}")
    st4(U, sU)
    for i in range(16): k(f"v_cvt_pk_bf16_f32 v{V+i}, -v{VI+i}, v{VR+i}")
    st4(V, sV)
    k(f"s_branch {fin}")
    k(f"{sp}:\ns_nop 15")
    for i in range(16):
        k(f"v_add_f32 v{UR+i}, v{UR+i}, v{VR+i} div:2\nv_sub_f32 v{UI+i}, v{UI+i}, v{VI+i} div:2".replace(" div:2", ""))
        k(f"v_mul_f32 v{UR+i}, 0.5, v{UR+i}\nv_mul_f32 v{UI+i}, 0.5, v{UI+i}")
        k(f"v_cvt_pk_bf16_f32 v{U+i}, v{UI+i}, v{UR+i}")
    st4(U, sU)
    k(f"{fin}:")
    stamps_out(k, 1, 5)
    k("s_endpgm")

sRB, sKQ, sCB, sFB = 44, 45, 46, 47
def g_ids(k):
    k(f"s_mul_i32 s{sKQ}, s{S_XCD}, 6\ns_lshr_b32 s{sCB}, s{S_I}, 2\ns_add_u32 s{sKQ}, s{sKQ}, s{sCB}")
    k(f"s_and_b32 s{sRB}, s{sKQ}, 15\ns_lshr_b32 s{sKQ}, s{sKQ}, 4\ns_and_b32 s{sCB}, s{S_I}, 3")
    k(f"s_lshl_b32 s{sFB}, s{sKQ}, 2\ns_add_u32 s{sFB}, s{sFB}, s{sCB}")

SCR = 131072
def role_G1(k, done):
    g_ids(k)
    comp = k.label()
    k(f"s_cmp_lt_u32 s{S_WAVE}, 4\ns_cbranch_scc1 {comp}")
    ra = RA(1)
    T = ra.get(6); vLane = ra.get(); vX = ra.get(4); vW = ra.get(); vB = ra.get(2, 2)
    sLW, sT0, sXo, sWo, sLx, sLw = 48, 49, 50, 51, 52, 53
    k(f"s_sub_u32 s{sLW}, s{S_WAVE}, 4\nv_and_b32 v{vLane}, 63, v0")
    k(f"s_lshr_b32 s{sXo}, s{sRB}, 1\ns_lshl_b32 s{sXo}, s{sXo}, 8\ns_and_b32 s{sT0}, s{sRB}, 1\ns_lshl_b32 s{sT0}, s{sT0}, 5\ns_add_u32 s{sXo}, s{sXo}, s{sT0}")
    k(f"s_lshl_b32 s{sT0}, s{sLW}, 3\ns_add_u32 s{sXo}, s{sXo}, s{sT0}\ns_mul_i32 s{sXo}, s{sXo}, 1280")
    k(f"v_bfe_u32 v{T}, v{vLane}, 3, 1\nv_bfe_u32 v{T+1}, v{vLane}, 4, 1\nv_lshl_add_u32 v{T}, v{T+1}, 6, v{T}\nv_bfe_u32 v{T+1}, v{vLane}, 5, 1\nv_lshl_add_u32 v{T}, v{T+1}, 1, v{T}")
    k(f"v_mul_u32_u24 v{T}, 1280, v{T}")
    k(f"v_and_b32 v{T+1}, 7, v{vLane}\nv_lshrrev_b32 v{T+2}, 4, v{vLane}\nv_xor_b32 v{T+1}, v{T+1}, v{T+2}")
    for n in range(4):
        k(f"v_xor_b32 v{T+2}, {4*(n&1)}, v{T+1}\nv_lshl_add_u32 v{vX+n}, v{T+2}, 4, v{T}\nv_add_u32 v{vX+n}, {(128*(n&1)+4*(n>>1))*1280}, v{vX+n}")
    k(f"v_lshrrev_b32 v{T}, 4, v{vLane}\nv_bfe_u32 v{T+1}, v{vLane}, 2, 2\nv_xor_b32 v{T+1}, v{T+1}, v{T}\nv_mul_u32_u24 v{vW}, 3072, v{T}\nv_lshl_add_u32 v{vW}, v{T+1}, 6, v{vW}")
    k(f"v_and_b32 v{T+1}, 3, v{vLane}\nv_lshl_add_u32 v{vW}, v{T+1}, 4, v{vW}")
    k(f"s_mul_i32 s{sWo}, s{sLW}, {16*3072}\ns_lshl_b32 s{sT0}, s{sFB}, 8\ns_add_u32 s{sWo}, s{sWo}, s{sT0}")
    k(f"s_lshl_b32 s{sLx}, s{sLW}, 12\ns_add_u32 s{sLw}, s{sLx}, 16384")
    k(f"v_lshlrev_b32 v{T+3}, 2, v{vLane}")
    k("s_waitcnt lgkmcnt(0)")
    k.srd(SRD_X, P_X, 2621440); k.srd(SRD_A, P_W1, 640 * 3072); k.srd(SRD_B, P_B1, 3072)
    k(f"s_lshl_b32 s{sT0}, s{sFB}, 8")
    k(f"buffer_load_dword v{vB}, v{T+3}, s[{SRD_B}:{SRD_B+3}], s{sT0} offen")
    def issue(c):
        sl = (c & 3) * 32768
        k(f"s_add_u32 s{sT0}, s{sXo}, {c*128}")
        for n in range(4):
            k(f"s_add_u32 m0, s{sLx}, {sl + n*1024}")
            k(f"buffer_load_dwordx4 v{vX+n}, s[{SRD_X}:{SRD_X+3}], s{sT0} offen lds")
        for n in range(4):
            k(f"s_add_u32 s{sT0}, s{sWo}, {(c*64 + n*4)*3072}\ns_add_u32 m0, s{sLw}, {sl + n*1024}")
            k(f"buffer_load_dwordx4 v{vW}, s[{SRD_A}:{SRD_A+3}], s{sT0} offen lds")
    for c in range(4): issue(c)
    stamp(k, 1)
    k("s_waitcnt vmcnt(32)")
    k(f"v_and_b32 v{vB+1}, 0xffff0000, v{vB}\nv_lshlrev_b32 v{vB}, 16, v{vB}\nv_lshlrev_b32 v{T+3}, 3, v{vLane}\nv_add_u32 v{T+3}, {SCR}, v{T+3}")
    k(f"ds_write_b64 v{T+3}, {vr(vB,2)} offset:512")
    for c in range(10):
        n = 24 if c == 0 else 8 * (min(c + 2, 9) - c)
        k(f"s_waitcnt vmcnt({n}) lgkmcnt(0)")
        if c in (0, 9): stamp(k, 2 if c == 0 else 3)
        k("s_barrier")
        if c >= 1 and c + 3 <= 9: issue(c + 3)
    stamps_out(k, 0, 4)
    k("s_endpgm")
    k(f"{comp}:")
    ra = RA(1)
    T = ra.get(12, 2)
    vLane = ra.get(); vL = ra.get(); vH = ra.get()
    vXa = ra.get(4); vWa = ra.get(4); vSX = ra.get(2); vSQ = ra.get(2); vCS = ra.get(); vA_ = ra.get(); vC_ = ra.get(); vSt = ra.get()
    FX = ra.get(8, 4); FW = ra.get(32, 4); ACC = ra.get(64, 4); CSB = ra.get(32, 4); HP = ra.get(8, 4)
    sT0, sOne, sCnt, sH, sK2 = 48, 49, 50, 51, 52
    k(f"v_and_b32 v{vLane}, 63, v0\nv_and_b32 v{vL}, 31, v0\nv_bfe_u32 v{vH}, v0, 5, 1")
    k(f"v_bfe_u32 v{T}, v{vL}, 1, 3\nv_xor_b32 v{T}, v{T}, v{vH}\nv_lshlrev_b32 v{T}, 4, v{T}\nv_lshl_add_u32 v{T}, v{vL}, 7, v{T}")
    k(f"s_lshl_b32 s{sT0}, s{S_WAVE}, 12\nv_add_u32 v{T}, s{sT0}, v{T}")
    for u in range(4): k(f"v_xor_b32 v{vXa+u}, {u*32}, v{T}")
    k(f"v_bfe_u32 v{T}, v{vLane}, 2, 2\nv_lshl_add_u32 v{T+1}, v{vH}, 3, v{T}\nv_lshlrev_b32 v{T+1}, 8, v{T+1}")
    k(f"v_bfe_u32 v{T+2}, v{vLane}, 4, 1\nv_lshl_add_u32 v{T+1}, v{T+2}, 5, v{T+1}\nv_and_b32 v{T+2}, 3, v{vLane}\nv_lshl_add_u32 v{T+1}, v{T+2}, 3, v{T+1}\nv_add_u32 v{T+1}, 16384, v{T+1}")
    for i in range(4):
        k(f"s_add_u32 s{sT0}, s{S_WAVE}, {i}\ns_and_b32 s{sT0}, s{sT0}, 3\nv_xor_b32 v{T+2}, s{sT0}, v{T}\nv_lshl_add_u32 v{vWa+i}, v{T+2}, 6, v{T+1}")
    for r in (vSX, vSX + 1, vSQ, vSQ + 1, vCS): k(f"v_mov_b32 v{r}, 0")
    for i in range(64): k(f"v_mov_b32 v{ACC+i}, 0")
    k(f"s_mov_b32 s{sOne}, 0x3f803f80\ns_mov_b32 s{sCnt}, 0\nv_lshlrev_b32 v{vSt}, 4, v{vLane}")
    k("s_waitcnt lgkmcnt(0)")
    k.srd(SRD_WS, P_WS, WS_USED)
    def reads(half, u, s):
        base = half * 32768
        k(f"ds_read_b128 {vr(FX+4*s,4)}, v{vXa+u} offset:{base}")
        for i in range(4):
            for j2 in range(2):
                k(f"ds_read_b64_tr_b16 {vr(FW+16*s+4*i+2*j2,2)}, v{vWa+i} offset:{base + (16*u+4*j2)*256}")
    def step(s):
        for i in range(4):
            k(f"{MF} {vr(ACC+16*i,16)}, {vr(FW+16*s+4*i,4)}, {vr(FX+4*s,4)}, {vr(ACC+16*i,16)}")
            k(f"v_dot2c_f32_bf16 v{vSQ+(i&1)}, v{FX+4*s+i}, v{FX+4*s+i}")
            k(f"v_dot2c_f32_bf16 v{vSX+(i&1)}, s{sOne}, v{FX+4*s+i}")
            k(f"v_dot2c_f32_bf16 v{vCS}, s{sOne}, v{FW+16*s+i}")
    k("s_barrier")
    stamp(k, 1)
    reads(0, 0, 0)
    loop = k.label(); last = k.label()
    k(f"{loop}:")
    for half in range(2):
        for u in range(4):
            s = u & 1
            if u < 3:
                reads(half, u + 1, s ^ 1)
                k("s_waitcnt lgkmcnt(9)")
            else:
                k("s_waitcnt lgkmcnt(0)")
                if half == 1:
                    k(f"s_add_u32 s{sCnt}, s{sCnt}, 1\ns_cmp_eq_u32 s{sCnt}, 5\ns_cbranch_scc1 {last}")
                    for r in list(range(vXa, vXa + 4)) + list(range(vWa, vWa + 4)): k(f"v_xor_b32 v{r}, 0x10000, v{r}")
                k("s_barrier")
                reads(half ^ 1, 0, s ^ 1)
            step(s)
    k(f"s_branch {loop}")
    k(f"{last}:")
    step(1)
    stamp(k, 2)
    k(f"v_add_f32 v{vSX}, v{vSX}, v{vSX+1}\nv_add_f32 v{vSQ}, v{vSQ}, v{vSQ+1}")
    for j, r in enumerate((vSX, vSQ, vCS)): k(f"v_mov_b32 v{T+j}, v{r}")
    for j, r in enumerate((vSX, vSQ, vCS)): k(f"v_permlane32_swap_b32 v{r}, v{T+j}")
    for j, r in enumerate((vSX, vSQ, vCS)): k(f"v_add_f32 v{r}, v{r}, v{T+j}")
    k(f"s_lshl_b32 s{sT0}, s{S_WAVE}, 7\ns_add_u32 s{sT0}, s{sT0}, {SCR}\nv_lshlrev_b32 v{T}, 2, v{vL}\nv_add_u32 v{T}, s{sT0}, v{T}")
    k(f"ds_write_b32 v{T}, v{vCS}")
    mu, var, m1, r1, m2, r2, t = vSX, vSQ, T + 1, T + 2, T + 3, T + 4, T + 5
    k(f"v_mul_f32 v{mu}, {lit(1/640)}, v{mu}\nv_mul_f32 v{var}, {lit(1/640)}, v{var}\nv_fma_f32 v{var}, -v{mu}, v{mu}, v{var}\nv_max_f32 v{var}, 0, v{var}")
    k(f"v_mov_b32 v{m1}, v{mu}\nv_mov_b32 v{r1}, v{var}")
    bfround2(k, m1, r1, t)
    def rs(r):
        k(f"v_add_f32 v{r}, {lit(1e-5)}, v{r}\nv_cvt_pk_bf16_f32 v{r}, v{r}, v{r}\nv_lshlrev_b32 v{r}, 16, v{r}\nv_sqrt_f32 v{r}, v{r}")
        k(f"v_cvt_pk_bf16_f32 v{r}, v{r}, v{r}\nv_lshlrev_b32 v{r}, 16, v{r}\nv_rcp_f32 v{r}, v{r}")
    rs(r1)
    k(f"v_sub_f32 v{m2}, v{mu}, v{m1}\nv_mul_f32 v{m2}, v{m2}, v{r1}\nv_mul_f32 v{r2}, v{var}, v{r1}\nv_mul_f32 v{r2}, v{r2}, v{r1}")
    bfround2(k, m2, r2, t)
    rs(r2)
    k(f"v_mul_f32 v{vA_}, v{r1}, v{r2}\nv_fmac_f32 v{m2}, v{m1}, v{r1}\nv_mul_f32 v{vC_}, v{m2}, v{r2}")
    k("s_waitcnt lgkmcnt(0)\ns_barrier")
    k(f"s_lshl_b32 s{sH}, s{sRB}, 2\ns_add_u32 s{sH}, s{sH}, s{S_WAVE}\ns_mul_i32 s{sH}, s{sH}, 12\ns_add_u32 s{sH}, s{sH}, s{sFB}\ns_lshl_b32 s{sH}, s{sH}, 13\ns_add_u32 s{sH}, s{sH}, {H_OFF}")
    k(f"s_mov_b32 s{sK2}, {lit(-0.1029432397)}\nv_mov_b32 v{vCS}, {lit(-2.302208198)}")
    for i in range(4):
        k(f"s_add_u32 s{sT0}, s{S_WAVE}, {i}\ns_and_b32 s{sT0}, s{sT0}, 3\ns_lshl_b32 s{sCnt}, s{sT0}, 7\ns_add_u32 s{sCnt}, s{sCnt}, {SCR}")
        k(f"v_lshlrev_b32 v{T}, 4, v{vH}\nv_add_u32 v{T}, s{sCnt}, v{T}")
        for q in range(4):
            k(f"ds_read_b128 {vr(CSB+4*q,4)}, v{T} offset:{q*32}\nds_read_b128 {vr(CSB+16+4*q,4)}, v{T} offset:{512+q*32}")
        k(f"s_lshl_b32 s{sT0}, s{sT0}, 11\ns_add_u32 s{sT0}, s{sT0}, s{sH}")
        k("s_waitcnt lgkmcnt(0)")
        for j in range(0, 16, 2):
            for jj in (j, j + 1):
                k(f"v_fma_f32 v{CSB+16+jj}, -v{vC_}, v{CSB+jj}, v{CSB+16+jj}")
                k(f"v_fmac_f32 v{CSB+16+jj}, v{vA_}, v{ACC+16*i+jj}")
            x0, x1, t0, t1 = CSB + 16 + j, CSB + 17 + j, T + 2, T + 3
            k(f"v_mul_f32 v{t0}, v{x0}, v{x0}\nv_mul_f32 v{t1}, v{x1}, v{x1}")
            k(f"v_fma_f32 v{t0}, v{t0}, s{sK2}, v{vCS}\nv_fma_f32 v{t1}, v{t1}, s{sK2}, v{vCS}")
            k(f"v_mul_f32 v{t0}, v{t0}, v{x0}\nv_mul_f32 v{t1}, v{t1}, v{x1}")
            k(f"v_exp_f32 v{t0}, v{t0}\nv_exp_f32 v{t1}, v{t1}")
            k(f"v_add_f32 v{t0}, 1.0, v{t0}\nv_add_f32 v{t1}, 1.0, v{t1}")
            k(f"v_rcp_f32 v{t0}, v{t0}\nv_rcp_f32 v{t1}, v{t1}")
            k(f"v_mul_f32 v{t0}, v{t0}, v{x0}\nv_mul_f32 v{t1}, v{t1}, v{x1}")
            k(f"v_cvt_pk_bf16_f32 v{HP+j//2}, v{t0}, v{t1}")
        for u in range(2):
            k(f"buffer_store_dwordx4 {vr(HP+4*u,4)}, v{vSt}, s[{SRD_WS}:{SRD_WS+3}], s{sT0} offen offset:{u*1024}")
    stamps_out(k, 0, 3)
    k("s_endpgm")

def role_G2(k, done):
    g_ids(k)
    comp = k.label()
    k(f"s_cmp_lt_u32 s{S_WAVE}, 4\ns_cbranch_scc1 {comp}")
    ra = RA(1)
    T = ra.get(4); vLane = ra.get(); vW = ra.get(5)
    sLW, sT0, sWo, sL = 48, 49, 50, 51
    k(f"s_sub_u32 s{sLW}, s{S_WAVE}, 4\nv_and_b32 v{vLane}, 63, v0")
    for n in range(5):
        k(f"v_add_u32 v{T}, {64*n}, v{vLane}\nv_mul_u32_u24 v{T+1}, 3277, v{T}\nv_lshrrev_b32 v{T+1}, 16, v{T+1}")
        k(f"v_mul_u32_u24 v{T+2}, {1280-320}, v{T+1}\nv_lshl_add_u32 v{vW+n}, v{T}, 4, v{T+2}")
    k(f"s_lshl_b32 s{sWo}, s{sKQ}, 9\ns_lshl_b32 s{sT0}, s{sLW}, 5\ns_add_u32 s{sWo}, s{sWo}, s{sT0}\ns_mul_i32 s{sWo}, s{sWo}, 1280\ns_mul_i32 s{sT0}, s{sCB}, 320\ns_add_u32 s{sWo}, s{sWo}, s{sT0}")
    k(f"s_mul_i32 s{sL}, s{sLW}, 10240")
    k("s_waitcnt lgkmcnt(0)")
    k.srd(SRD_A, P_W2, 1536 * 1280)
    for pt in range(4):
        for g in range(2):
            k(f"s_add_u32 s{sT0}, s{sWo}, {(pt*128+g*16)*1280}")
            for n in range(5):
                k(f"s_add_u32 m0, s{sL}, {pt*40960+g*5120+n*1024}")
                k(f"buffer_load_dwordx4 v{vW+n}, s[{SRD_A}:{SRD_A+3}], s{sT0} offen lds")
    stamp(k, 1)
    for pt in range(4):
        k(f"s_waitcnt vmcnt({30-10*pt})")
        if pt in (0, 3): stamp(k, 2 if pt == 0 else 3)
        k("s_barrier")
    stamps_out(k, 1, 4)
    k("s_endpgm")
    k(f"{comp}:")
    ra = RA(1)
    T = ra.get(3); vLane = ra.get(); vWa = ra.get(); vSt = ra.get()
    HF = ra.get(128, 4); ACC = ra.get(80, 4); FW = ra.get(40, 4)
    sT0, sH, sP = 48, 49, 50
    k(f"v_and_b32 v{vLane}, 63, v0\nv_lshlrev_b32 v{vSt}, 4, v{vLane}")
    k(f"s_lshl_b32 s{sH}, s{sRB}, 2\ns_add_u32 s{sH}, s{sH}, s{S_WAVE}\ns_mul_i32 s{sH}, s{sH}, 3\ns_add_u32 s{sH}, s{sH}, s{sKQ}\ns_lshl_b32 s{sH}, s{sH}, 15\ns_add_u32 s{sH}, s{sH}, {H_OFF}")
    k("s_waitcnt lgkmcnt(0)")
    k.srd(SRD_WS, P_WS, WS_USED)
    ws = f"s[{SRD_WS}:{SRD_WS+3}]"
    for ks in range(32):
        if ks % 4 == 0: k(f"s_add_u32 s{sT0}, s{sH}, {ks*1024}")
        k(f"buffer_load_dwordx4 {vr(HF+4*ks,4)}, v{vSt}, {ws}, s{sT0} offen offset:{(ks&3)*1024}")
    k(f"v_bfe_u32 v{T}, v{vLane}, 2, 2\nv_lshrrev_b32 v{T+1}, 5, v{vLane}\nv_lshl_add_u32 v{T}, v{T+1}, 2, v{T}\nv_mul_u32_u24 v{vWa}, 320, v{T}")
    k(f"v_bfe_u32 v{T}, v{vLane}, 4, 1\nv_lshl_add_u32 v{vWa}, v{T}, 5, v{vWa}\nv_and_b32 v{T}, 3, v{vLane}\nv_lshl_add_u32 v{vWa}, v{T}, 3, v{vWa}")
    k(f"v_mul_u32_u24 v{T+1}, 10240, v{T+1}\nv_and_b32 v{T}, 31, v{vLane}\nv_lshl_add_u32 v{vLane}, v{T}, 4, v{T+1}")
    k(f"s_lshl_b32 s{sP}, s{sKQ}, 8\ns_lshl_b32 s{sT0}, s{sRB}, 4\ns_add_u32 s{sP}, s{sP}, s{sT0}\ns_lshl_b32 s{sT0}, s{S_WAVE}, 2\ns_add_u32 s{sP}, s{sP}, s{sT0}\ns_mul_i32 s{sP}, s{sP}, 10240")
    k(f"s_mul_i32 s{sT0}, s{sCB}, 2560\ns_add_u32 s{sP}, s{sP}, s{sT0}\ns_add_u32 s{sP}, s{sP}, {P_OFF}")
    def reads(ks):
        s = ks & 1
        for t in range(5):
            for j2 in range(2):
                k(f"ds_read_b64_tr_b16 {vr(FW+20*s+4*t+2*j2,2)}, v{vWa} offset:{(ks&7)*5120+j2*2560+t*64}")
    k("s_barrier")
    stamp(k, 1)
    reads(0)
    for ks in range(32):
        s = ks & 1
        if ks < 31:
            if (ks & 7) == 7:
                k(f"s_barrier\nv_add_u32 v{vWa}, 40960, v{vWa}")
            reads(ks + 1)
            k(f"s_waitcnt vmcnt({31-ks}) lgkmcnt(10)")
        else:
            k("s_waitcnt vmcnt(0) lgkmcnt(0)")
        for t in range(5):
            c = "0" if ks == 0 else vr(ACC + 16 * t, 16)
            k(f"{MF} {vr(ACC+16*t,16)}, {vr(HF+4*ks,4)}, {vr(FW+20*s+4*t,4)}, {c}")
    stamp(k, 2)
    for t in range(5):
        for a in range(2):
            o = HF + 8 * t + 4 * a
            for j in range(4): k(f"v_cvt_pk_bf16_f32 v{o+j}, v{ACC+16*t+8*a+2*j}, v{ACC+16*t+8*a+2*j+1}")
            if t == 0 and a == 1: k(f"s_add_u32 s{sT0}, s{sP}, 20480")
            k(f"buffer_store_dwordx4 {vr(o,4)}, v{vLane}, {ws}, s{sP if a == 0 else sT0} offen offset:{t*512}")
    stamps_out(k, 1, 3)
    k("s_endpgm")

S_LDS = 10240
def role_FIN(k, done):
    ra = RA(1)
    T = ra.get(8, 2)
    vLane, vL, vH, vLf, vHf = lane_vars(k, ra)
    vK1f = ra.get(); vYo = ra.get(); vSa = ra.get(); vSb = ra.get(); vPa = ra.get(); vPb = ra.get(); vXa = ra.get(); vXb = ra.get()
    XV = ra.get(10); B2 = ra.get(2); PA = ra.get(12, 4); PB = ra.get(3); SA = ra.get(4, 4); SB = ra.get(); O = ra.get(10)
    YD = ra.get(12, 4); M20R = ra.get(12, 4); M20I = ra.get(12, 4); M32R = ra.get(16, 4); M32I = ra.get(16, 4)
    TC = ra.get(16); TS = ra.get(16); DR = ra.get(16, 4); DI = ra.get(16, 4); PK = ra.get(16, 4)
    sT0, sY, sG, sRow, sP, sLo, sHi, sRb = 44, 45, 46, 47, 48, 49, 50, 51
    k(f"s_lshl_b32 s{sG}, s{S_XCD}, 5\ns_add_u32 s{sG}, s{sG}, s{S_I}")
    k(f"s_lshl_b32 s{sY}, s{S_XCD}, 10\ns_lshr_b32 s{sT0}, s{S_I}, 2\ns_lshl_b32 s{sT0}, s{sT0}, 7\ns_add_u32 s{sY}, s{sY}, s{sT0}\ns_and_b32 s{sT0}, s{S_I}, 3\ns_lshl_b32 s{sT0}, s{sT0}, 4\ns_add_u32 s{sY}, s{sY}, s{sT0}\ns_add_u32 s{sY}, s{sY}, {Y_OFF}")
    def yaddr(sI):
        k(f"s_lshl_b32 s{sT0}, s{sI}, 5\nv_add_u32 v{T}, s{sT0}, v{vL}\nv_sub_u32 v{T+1}, 320, v{T}\nv_cmp_eq_u32 vcc, 0, v{T}\nv_cndmask_b32 v{T+1}, v{T+1}, v{T}, vcc")
        k(f"v_cmp_eq_u32 vcc, 1, v{vH}\nv_cndmask_b32 v{T}, v{T}, v{T+1}, vcc\nv_lshlrev_b32 v{T}, 13, v{T}\nv_lshl_add_u32 v{vYo}, v{vH}, 6, v{T}")
    yaddr(S_WAVE)
    k("s_waitcnt lgkmcnt(0)")
    k.srd(SRD_WS, P_WS, WS_USED); k.srd(SRD_X, P_X, 2621440); k.srd(SRD_OUT, P_OUT, 2621440); k.srd(SRD_B, P_B2, 1280)
    ws = f"s[{SRD_WS}:{SRD_WS+3}]"
    k(f"s_lshl_b32 m0, s{S_WAVE}, 10")
    k(f"buffer_load_dwordx4 v{vYo}, {ws}, s{sY} offen lds")
    l = k.label()
    k(f"s_cmp_ge_u32 s{S_WAVE}, 2\ns_cbranch_scc1 {l}")
    k(f"s_add_u32 s{sRow}, s{S_WAVE}, 8")
    yaddr(sRow)
    k(f"s_lshl_b32 m0, s{sRow}, 10")
    k(f"buffer_load_dwordx4 v{vYo}, {ws}, s{sY} offen lds")
    k(f"{l}:")
    k(f"s_lshr_b32 s{sT0}, s{S_WAVE}, 2\ns_lshl_b32 s{sT0}, s{sT0}, 6\ns_add_u32 s{sT0}, s{sT0}, 512\nv_add_u32 v{T}, s{sT0}, v{vLane}")
    k(f"v_lshlrev_b32 v{vXa}, 1, v0\nv_lshlrev_b32 v{vXb}, 1, v{T}\nv_lshlrev_b32 v{vPa}, 4, v0")
    k(f"s_and_b32 s{sRb}, s{S_WAVE}, 3\ns_lshl_b32 s{sT0}, s{sRb}, 2\nv_lshlrev_b32 v{vPb}, 4, v{T}\nv_add_u32 v{vPb}, s{sT0}, v{vPb}")
    k(f"v_mul_u32_u24 v{T+1}, 3277, v0\nv_lshrrev_b32 v{T+1}, 16, v{T+1}\nv_lshl_add_u32 v{vSa}, v{T+1}, 4, v{vPa}")
    k(f"v_mul_u32_u24 v{T+1}, 3277, v{T}\nv_lshrrev_b32 v{T+1}, 16, v{T+1}\nv_lshl_add_u32 v{vSb}, v{T+1}, 4, v{vPb}")
    k(f"s_lshl_b32 s{sRow}, s{S_XCD}, 8\ns_lshl_b32 s{sT0}, s{S_I}, 1\ns_add_u32 s{sRow}, s{sRow}, s{sT0}\ns_mul_i32 s{sRow}, s{sRow}, 1280")
    k(f"s_mul_i32 s{sRb}, s{sRb}, {64*1280}\ns_add_u32 s{sRb}, s{sRb}, s{sRow}")
    k(f"s_mul_i32 s{sP}, s{sG}, 10240\ns_add_u32 s{sP}, s{sP}, {P_OFF}")
    for kq in range(3):
        k(f"s_add_u32 s{sT0}, s{sP}, {kq*2621440}")
        k(f"buffer_load_dwordx4 {vr(PA+4*kq,4)}, v{vPa}, {ws}, s{sT0} offen")
        k(f"buffer_load_dword v{PB+kq}, v{vPb}, {ws}, s{sT0} offen")
    xs = f"s[{SRD_X}:{SRD_X+3}]"
    for r in range(4):
        k(f"s_add_u32 s{sT0}, s{sRow}, {r*64*1280}")
        for b in range(2): k(f"buffer_load_short_d16_hi v{XV+2*r+b}, v{vXa}, {xs}, s{sT0} offen offset:{b*1280}")
    for b in range(2): k(f"buffer_load_short_d16_hi v{XV+8+b}, v{vXb}, {xs}, s{sRb} offen offset:{b*1280}")
    k(f"buffer_load_short_d16_hi v{B2}, v{vXa}, s[{SRD_B}:{SRD_B+3}], 0 offen\nbuffer_load_short_d16_hi v{B2+1}, v{vXb}, s[{SRD_B}:{SRD_B+3}], 0 offen")
    stamp(k, 1)
    nofft = k.label(); join = k.label()
    k(f"s_cmp_ge_u32 s{S_WAVE}, 4\ns_cbranch_scc1 {nofft}")
    gen_k1f(k, vL, vK1f, T)
    gen_m20(k, vK1f, vHf, T, M20R, M20I)
    gen_m32(k, vLf, vHf, T, M32R, M32I)
    gen_tw(k, vK1f, vHf, T, 640, TC, TS, scale=1.0 / (2048 * 640))
    k(f"v_mov_b32 v{YD+10}, 0\nv_mov_b32 v{YD+11}, 0")
    k(f"s_lshl_b32 s{sT0}, s{S_WAVE}, 2\nv_lshlrev_b32 v{T+6}, 4, v{vLane}\nv_add_u32 v{T+6}, s{sT0}, v{T+6}")
    k(f"v_mul_u32_u24 v{T+7}, 336, v{vL}\nv_mul_u32_u24 v{T+5}, 160, v{vH}\nv_add3_u32 v{T+7}, v{T+7}, v{T+5}, s{sT0}")
    stamp(k, 2)
    k("s_waitcnt vmcnt(18)\ns_barrier")
    stamp(k, 3)
    for i in range(10): k(f"ds_read_b32 v{YD+i}, v{T+6} offset:{i*1024}")
    k("s_waitcnt lgkmcnt(0)")
    mm(k, DI, YD, M20R, 3); mm(k, DR, YD, M20I, 3)
    twiddle_pack(k, DR, DI, TC, TS, PK, T, True)
    mm(k, DI, PK, M32R, 4); mm(k, DR, PK, M32I, 4)
    for i in range(10):
        k(f"v_cvt_pk_bf16_f32 v{YD+i}, v{DR+i}, v{DI+i}")
        k(f"ds_write_b32 v{T+7}, v{YD+i} offset:{S_LDS+i*16}")
    k(f"s_branch {join}")
    k(f"{nofft}:\ns_waitcnt vmcnt(18)\ns_barrier")
    k(f"{join}:")
    k(f"s_mov_b32 s{sLo}, 0x00003f80\ns_mov_b32 s{sHi}, 0x3f800000")
    k("s_waitcnt vmcnt(0)")
    stamp(k, 4)
    for j in range(10):
        k(f"v_mov_b32 v{O+j}, v{B2 + (j >= 8)}")
    for kq in range(3):
        for j in range(10):
            src = PA + 4 * kq + j // 2 if j < 8 else PB + kq
            k(f"v_dot2c_f32_bf16 v{O+j}, s{sHi if j & 1 else sLo}, v{src}")
    E = DR
    for j in range(10): k(f"v_mul_f32 v{E+j}, {lit(-1.4426950408889634)}, v{O+j}")
    for j in range(10): k(f"v_exp_f32 v{E+j}, v{E+j}")
    for j in range(10): k(f"v_add_f32 v{E+j}, 1.0, v{E+j}")
    for j in range(10): k(f"v_rcp_f32 v{E+j}, v{E+j}")
    for j in range(10): k(f"v_mul_f32 v{O+j}, v{O+j}, v{E+j}")
    k("s_waitcnt lgkmcnt(0)\ns_barrier")
    k(f"ds_read_b128 {vr(SA,4)}, v{vSa} offset:{S_LDS}\nds_read_b32 v{SB}, v{vSb} offset:{S_LDS}\ns_waitcnt lgkmcnt(0)")
    os_ = f"s[{SRD_OUT}:{SRD_OUT+3}]"
    for p in range(5):
        src = SA + p if p < 4 else SB
        k(f"v_lshlrev_b32 v{T}, 16, v{src}\nv_and_b32 v{T+1}, 0xffff0000, v{src}")
        k(f"v_fmac_f32 v{XV+2*p}, v{T}, v{O+2*p}\nv_fmac_f32 v{XV+2*p+1}, v{T+1}, v{O+2*p+1}")
        k(f"v_cvt_pk_bf16_f32 v{O+2*p}, v{XV+2*p}, v{XV+2*p+1}")
        if p < 4: k(f"s_add_u32 s{sT0}, s{sRow}, {p*64*1280}")
        so = sT0 if p < 4 else sRb
        va = vXa if p < 4 else vXb
        k(f"buffer_store_short v{O+2*p}, v{va}, {os_}, s{so} offen\nbuffer_store_short_d16_hi v{O+2*p}, v{va}, {os_}, s{so} offen offset:1280")
    stamps_out(k, 2, 5)
    k("s_endpgm")

def two_role(name, lds, G, F):
    k = K(name, 256, 512, lds=lds, vgpr=256, sgpr=102)
    done = k.label("done")
    prologue(k, done)
    fl = k.label("F")
    k(f"s_cmp_ge_u32 s{S_I}, 24\ns_cbranch_scc1 {fl}")
    G(k, done)
    k(f"{fl}:")
    F(k, done)
    k(f"{done}:\ns_endpgm")
    k.lines = hz.fix(k.lines)
    return k

def build(path, stamps=False, scrub=False):
    global STAMPS
    STAMPS = stamps
    k1 = two_role("a_kernel", SCR + 1024, role_G1, role_F1)
    k2 = two_role("b_kernel", 163840, role_G2, role_F2)
    k3 = K("c_kernel", 256, 512, lds=S_LDS + 10752, vgpr=256, sgpr=102)
    done = k3.label("done")
    prologue(k3, done)
    role_FIN(k3, done)
    k3(f"{done}:\ns_endpgm")
    k3.lines = hz.fix(k3.lines)
    ks = [k1, k2, k3]
    if scrub: ks = [scrub_kernel()] + ks
    write(path, ks, header="GFNet spectral filter x channel-MLP gate, generated by tools/gen1.py")

if __name__ == "__main__":
    assert all((kk * 6554) >> 16 == kk // 10 and (kk * 3277) >> 16 == kk // 20 for kk in range(641))
    build("v1.s")
    build("v1_st.s", stamps=True, scrub=True)
```

```python
import sys, struct
sys.path.insert(0, "tools")
from asmlib import *
import hz

NAME = "recurrent_scan__spectral_gfnet__mixer_channel_mlp__prompt_kernel"
X1_OFF = 0
WP_OFF = 320 * 8192
Y_OFF = WP_OFF + 321 * 12288
H_OFF = Y_OFF + 320 * 8192
P_OFF = H_OFF + 2048 * 1536 * 2
ST_OFF = P_OFF + 3 * 2621440
FX1 = ST_OFF + 32768
FWP = FX1 + 4096
FY = FWP + 4096
FH = FY + 4096
FP = FH + 192 * 128
WS_USED = FP + 64 * 128
STAMPS = False
SPIN = 400000

def f2u(f): return struct.unpack("<I", struct.pack("<f", f))[0]
def lit(f): return "0x%08x" % f2u(f)
def vr(b, n): return "v[%d:%d]" % (b, b + n - 1)
def sr(b, n=4): return "s[%d:%d]" % (b, b + n - 1)

S_WAVE, S_XCD, S_I = 3, 4, 5
S_NON = 6
SRD_X, SRD_WS, SRD_A, SRD_B, SRD_OUT, SRD_C = 8, 12, 16, 20, 24, 28
S_RET = 38
S_SPIN = 40
P_X, P_WR, P_WI, P_W1, P_B1, P_W2, P_B2, P_OUT, P_DBG, P_WS = 64, 66, 68, 72, 74, 76, 78, 80, 82, 84
MF = "v_mfma_f32_32x32x16_bf16"
WS = sr(SRD_WS)
M20R, M20I, M32R, M32I, TC, TS = 168, 180, 192, 208, 224, 240
vLane, vL, vH, vLf, vHf, vK1f = 1, 2, 3, 4, 5, 6
TT = 8

def stamp(k, n):
    if STAMPS: k("s_memrealtime s[%d:%d]" % (86 + 2 * n, 87 + 2 * n))
def stamps_out(k):
    if STAMPS:
        k("s_waitcnt vmcnt(0) lgkmcnt(0)")
        k("s_memrealtime s[100:101]")
        stamp_store(k, 0, [86 + 2 * i for i in range(8)], P_WS, tmp_s=32, waves=8, vt=4)

class L(list):
    def __call__(self, s):
        for l in s.strip("\n").split("\n"): self.append(l.strip())

def inter(k, main, fill, lead=0):
    n = len(main); m = len(fill); done = 0
    for j in range(min(lead, m)): k(fill[j]); done += 1
    for i, x in enumerate(main):
        k(x)
        upto = lead + (m - lead) * (i + 1) // n
        while done < upto: k(fill[done]); done += 1

def idx16(i): return 8 * (i >> 2) + (i & 3)

def lane_vars(k):
    k(f"v_and_b32 v{vLane}, 63, v0\nv_and_b32 v{vL}, 31, v0\nv_bfe_u32 v{vH}, v0, 5, 1")

def gen_tw(k, vKf, N):
    a, b = TT, TT + 1
    k(f"v_mul_f32 v{a}, {lit(1/N)}, v{vKf}")
    k(f"v_mul_f32 v{b}, v{a}, v{vHf}\nv_mul_f32 v{b}, 4.0, v{b}")
    for i in range(16): k(f"v_fmamk_f32 v{TS+i}, v{a}, {lit(idx16(i))}, v{b}")
    for i in range(16): k(f"v_cos_f32 v{TC+i}, v{TS+i}\nv_sin_f32 v{TS+i}, v{TS+i}")

def gen_mat(k, a, b, n, MR, MI, idx):
    for i in range(n): k(f"v_fmamk_f32 v{MI+i}, v{a}, {lit(idx(i))}, v{b}")
    for i0 in range(0, n, 4):
        js = list(range(i0, min(n, i0 + 4)))
        for j in js: k(f"v_cos_f32 v{TT+2+j-i0}, v{MI+j}\nv_sin_f32 v{TT+6+j-i0}, v{MI+j}")
        for j in js: k(f"v_cvt_pk_bf16_f32 v{MR+j}, v{TT+2+j-i0}, v{TT+6+j-i0}\nv_cvt_pk_bf16_f32 v{MI+j}, -v{TT+6+j-i0}, v{TT+2+j-i0}")

def consts_sub(k, label):
    k(f"{label}:")
    T = TT
    k(f"v_cvt_f32_u32 v{vLf}, v{vL}\nv_cvt_f32_u32 v{vHf}, v{vH}")
    k(f"v_bfe_u32 v{T}, v{vL}, 2, 1\nv_mul_u32_u24 v{T}, 10, v{T}")
    k(f"v_lshrrev_b32 v{T+1}, 3, v{vL}\nv_lshl_add_u32 v{T}, v{T+1}, 2, v{T}")
    k(f"v_and_b32 v{T+1}, 3, v{vL}\nv_add_u32 v{T}, v{T}, v{T+1}\nv_cvt_f32_u32 v{vK1f}, v{T}")
    k(f"v_mul_f32 v{T}, {lit(1/20)}, v{vK1f}\nv_mul_f32 v{T+1}, v{vK1f}, v{vHf}\nv_mul_f32 v{T+1}, 0.5, v{T+1}")
    gen_mat(k, T, T + 1, 10, M20R, M20I, lambda i: i)
    for i in (10, 11): k(f"v_mov_b32 v{M20R+i}, 0\nv_mov_b32 v{M20I+i}, 0")
    k(f"v_mul_f32 v{T}, {lit(1/32)}, v{vLf}\nv_mul_f32 v{T+1}, v{T}, v{vHf}\nv_mul_f32 v{T+1}, 4.0, v{T+1}")
    gen_mat(k, T, T + 1, 16, M32R, M32I, idx16)
    gen_tw(k, vK1f, 640)
    k(f"s_nop 1\ns_setpc_b64 {sr(S_RET,2)}")

def mm(D, A, B, nsteps):
    return [f"{MF} {vr(D,16)}, {vr(A+4*q,4)}, {vr(B+4*q,4)}, {'0' if q == 0 else vr(D,16)}" for q in range(nsteps)]
def mm2(D0, D1, A0, B0, A1, B1, n):
    a = mm(D0, A0, B0, n); b = mm(D1, A1, B1, n)
    return [x for p in zip(a, b) for x in p]

def twiddle(DR, DI, PK, T, inv):
    o = L()
    for i0 in range(0, 16, 4):
        R = range(i0, i0 + 4)
        A = lambda i: T + 2 * (i & 3)
        for i in R: o(f"v_mul_f32 v{A(i)}, v{DR+i}, v{TC+i}\nv_mul_f32 v{A(i)+1}, v{DI+i}, v{TC+i}")
        for i in R:
            if not inv: o(f"v_fmac_f32 v{A(i)}, v{DI+i}, v{TS+i}\nv_fma_f32 v{A(i)+1}, -v{DR+i}, v{TS+i}, v{A(i)+1}")
            else: o(f"v_fma_f32 v{A(i)}, -v{DI+i}, v{TS+i}, v{A(i)}\nv_fmac_f32 v{A(i)+1}, v{DR+i}, v{TS+i}")
        for i in R:
            if not inv: o(f"v_cvt_pk_bf16_f32 v{PK+i}, v{A(i)}, v{A(i)+1}")
            else: o(f"v_cvt_pk_bf16_f32 v{PK+i}, v{A(i)+1}, v{A(i)}")
    return o

def poll(k, vA, soff, vT, mask=None, sleep=2, first_issued=False, imm=0):
    lp = k.label("poll"); ex = k.label("pollx"); chk = k.label("pollc")
    if mask is not None: k(f"s_mov_b64 exec, {mask}")
    k(f"s_mov_b32 s{S_SPIN}, 0")
    if first_issued: k(f"s_branch {chk}")
    k(f"{lp}:")
    k(f"buffer_load_dwordx2 {vr(vT,2)}, v{vA}, {WS}, {soff} offen offset:{imm} sc1")
    k(f"{chk}:")
    k("s_waitcnt vmcnt(0)")
    k(f"v_cmp_ne_u64 vcc, {sr(S_NON,2)}, {vr(vT,2)}")
    k(f"s_add_u32 s{S_SPIN}, s{S_SPIN}, 1\ns_cbranch_vccz {ex}")
    if sleep: k(f"s_sleep {sleep}")
    k(f"s_cmp_lt_u32 s{S_SPIN}, {SPIN}\ns_cbranch_scc1 {lp}")
    k(f"{ex}:")
    if mask is not None: k("s_mov_b64 exec, -1")

def get_nonce(k, vZ, vT, first_issued=False):
    lp = k.label("non"); ex = k.label("nonx"); chk = k.label("nonc")
    k(f"s_mov_b32 s{S_SPIN}, 0")
    if first_issued: k(f"s_branch {chk}")
    k(f"{lp}:")
    k(f"buffer_load_dwordx2 {vr(vT,2)}, v{vZ}, {sr(SRD_C)}, 0 offen sc1")
    k(f"{chk}:")
    k(f"s_waitcnt vmcnt(0)\nv_readfirstlane_b32 s{S_NON}, v{vT}\nv_readfirstlane_b32 s{S_NON+1}, v{vT+1}")
    k(f"s_add_u32 s{S_SPIN}, s{S_SPIN}, 1\ns_cmp_lg_u32 s{S_NON}, 0\ns_cbranch_scc1 {ex}")
    k(f"s_sleep 1\ns_cmp_lt_u32 s{S_SPIN}, {SPIN}\ns_cbranch_scc1 {lp}")
    k(f"{ex}:")

def flag_store(k, vA, soff, vT, mask, imm=0):
    k(f"v_mov_b32 v{vT}, s{S_NON}\nv_mov_b32 v{vT+1}, s{S_NON+1}\ns_mov_b64 exec, {mask}")
    k(f"buffer_store_dwordx2 {vr(vT,2)}, v{vA}, {WS}, {soff} offen offset:{imm} sc1")
    k("s_mov_b64 exec, -1")

def code_prefetch(k, vT, sT):
    k(f"s_getpc_b64 {sr(SRD_B,2)}")
    here = k.label("pc")
    k(f"{here}:")
    k(f"s_sub_u32 s{SRD_B}, s{SRD_B}, {here}-{NAME}\ns_subb_u32 s{SRD_B+1}, s{SRD_B+1}, 0\ns_and_b32 s{SRD_B+1}, s{SRD_B+1}, 0xffff")
    k(f"s_mov_b32 s{SRD_B+2}, kernel_end-{NAME}\ns_mov_b32 s{SRD_B+3}, 0x00020000")
    k(f"s_lshl_b32 s{sT}, s{S_I}, 10\nv_lshlrev_b32 v{vT}, 4, v{vLane}")
    k(f"buffer_load_dwordx4 {vr(vT+2,4)}, v{vT}, {sr(SRD_B)}, s{sT} offen")

sRB, sKQ, sCB, sFB = 44, 45, 46, 47
def g_ids(k):
    k(f"s_mul_i32 s{sKQ}, s{S_XCD}, 6\ns_lshr_b32 s{sCB}, s{S_I}, 2\ns_add_u32 s{sKQ}, s{sKQ}, s{sCB}")
    k(f"s_and_b32 s{sRB}, s{sKQ}, 15\ns_lshr_b32 s{sKQ}, s{sKQ}, 4\ns_and_b32 s{sCB}, s{S_I}, 3")
    k(f"s_lshl_b32 s{sFB}, s{sKQ}, 2\ns_add_u32 s{sFB}, s{sFB}, s{sCB}")

SCR = 131072
UNIT = [7, 5, 4, 3, 2, 1, 0, 6]
Y_LDS = 7 * 20480

def role_Gload(k, lab):
    T = TT
    vX, vW, vW2, vCr, vCw = 24, 28, 29, 34, 35
    CA, CR = 36, 44
    sLW, sT0, sXo, sWo, sLx, sW2, sC, sSl = 48, 49, 50, 51, 52, 53, 54, 55
    g_ids(k)
    lane_vars(k)
    k(f"s_sub_u32 s{sLW}, s{S_WAVE}, 4")
    k(f"s_lshr_b32 s{sXo}, s{sRB}, 1\ns_lshl_b32 s{sXo}, s{sXo}, 8\ns_and_b32 s{sT0}, s{sRB}, 1\ns_lshl_b32 s{sT0}, s{sT0}, 5\ns_add_u32 s{sXo}, s{sXo}, s{sT0}")
    k(f"s_lshl_b32 s{sT0}, s{sLW}, 3\ns_add_u32 s{sXo}, s{sXo}, s{sT0}\ns_mul_i32 s{sXo}, s{sXo}, 1280")
    k(f"v_bfe_u32 v{T}, v{vLane}, 3, 1\nv_bfe_u32 v{T+1}, v{vLane}, 4, 1\nv_lshl_add_u32 v{T}, v{T+1}, 6, v{T}\nv_lshl_add_u32 v{T}, v{vH}, 1, v{T}")
    k(f"v_mul_u32_u24 v{T}, 1280, v{T}")
    k(f"v_and_b32 v{T+1}, 7, v{vLane}\nv_lshrrev_b32 v{T+2}, 4, v{vLane}\nv_xor_b32 v{T+1}, v{T+1}, v{T+2}")
    k(f"v_lshl_add_u32 v{vX}, v{T+1}, 4, v{T}\nv_xor_b32 v{vX+1}, 64, v{vX}\nv_add_u32 v{vX+1}, {128*1280}, v{vX+1}")
    k(f"v_add_u32 v{vX+2}, {4*1280}, v{vX}\nv_add_u32 v{vX+3}, {4*1280}, v{vX+1}")
    k(f"v_bfe_u32 v{T+1}, v{vLane}, 2, 2\nv_xor_b32 v{T+1}, v{T+1}, v{T+2}\nv_mul_u32_u24 v{vW}, 3072, v{T+2}\nv_lshl_add_u32 v{vW}, v{T+1}, 6, v{vW}")
    k(f"v_and_b32 v{T+3}, 3, v{vLane}\nv_lshl_add_u32 v{vW}, v{T+3}, 4, v{vW}")
    k(f"s_mul_i32 s{sWo}, s{sLW}, {16*3072}\ns_lshl_b32 s{sT0}, s{sFB}, 8\ns_add_u32 s{sWo}, s{sWo}, s{sT0}")
    k(f"s_lshl_b32 s{sLx}, s{sLW}, 12")
    k("s_waitcnt lgkmcnt(0)")
    k.srd(SRD_X, P_X, 2621440); k.srd(SRD_A, P_W1, 640 * 3072)
    def issue():
        k(f"s_add_u32 m0, s{sLx}, s{sSl}")
        for n in range(4):
            k(f"buffer_load_dwordx4 v{vX+n}, {sr(SRD_X)}, s{sXo} offen lds")
            k(f"s_add_u32 m0, m0, {1024 if n < 3 else 16384-3072}")
        for n in range(4):
            k(f"buffer_load_dwordx4 v{vW}, {sr(SRD_A)}, s{sWo} offen lds")
            if n < 3: k("s_add_u32 m0, m0, 1024")
            k(f"s_add_u32 s{sWo}, s{sWo}, {4*3072 if n < 3 else 52*3072}")
        k(f"s_add_u32 s{sXo}, s{sXo}, 128\ns_sub_u32 s{sSl}, s{sSl}, 32768\ns_and_b32 s{sSl}, s{sSl}, 0x1ffff")
    k(f"s_mov_b32 s{sSl}, 32768\ns_mov_b32 s{sC}, 0")
    l0 = k.label()
    k(f"{l0}:")
    issue()
    k(f"s_add_u32 s{sC}, s{sC}, 1\ns_cmp_lt_u32 s{sC}, 4\ns_cbranch_scc1 {l0}")
    stamp(k, 1)
    k(f"v_lshlrev_b32 v{vCr}, 8, v{T+2}\nv_lshl_add_u32 v{vCr}, v{T+1}, 6, v{vCr}\nv_lshl_add_u32 v{vCr}, v{T+3}, 4, v{vCr}")
    k(f"s_add_u32 s{sT0}, s{sLx}, {16384+32768}\nv_add_u32 v{vCr}, s{sT0}, v{vCr}")
    k(f"v_and_b32 v{vCw}, 15, v{vLane}\nv_lshlrev_b32 v{vCw}, 5, v{vCw}\nv_add_u32 v{vCw}, {SCR}, v{vCw}")
    for j in range(8): k(f"v_mov_b32 v{CA+j}, 0")
    k(f"ds_write_b128 v{vCw}, {vr(CA,4)}\nds_write_b128 v{vCw}, {vr(CA,4)} offset:16")
    for n in range(5):
        k(f"v_add_u32 v{T}, {64*n}, v{vLane}\nv_mul_u32_u24 v{T+1}, 3277, v{T}\nv_lshrrev_b32 v{T+1}, 16, v{T+1}")
        k(f"v_mul_u32_u24 v{T+2}, {1280-320}, v{T+1}\nv_lshl_add_u32 v{vW2+n}, v{T}, 4, v{T+2}")
    k(f"s_lshl_b32 s{sW2}, s{sKQ}, 9\ns_lshl_b32 s{sT0}, s{sLW}, 4\ns_add_u32 s{sW2}, s{sW2}, s{sT0}\ns_mul_i32 s{sW2}, s{sW2}, 1280\ns_mul_i32 s{sT0}, s{sCB}, 320\ns_add_u32 s{sW2}, s{sW2}, s{sT0}")
    k.srd(SRD_B, P_W2, 1536 * 1280)
    k.srd(SRD_WS, P_WS, WS_USED)
    k(f"s_call_b64 {sr(S_RET,2)}, {lab['consts']}")
    stamp(k, 2)
    def colsum():
        for n in range(4): k(f"ds_read_b128 {vr(CR+4*n,4)}, v{vCr} offset:{n*1024}")
        k(f"v_subrev_u32 v{vCr}, 32768, v{vCr}\nv_and_b32 v{vCr}, 0x1ffff, v{vCr}")
        for n in range(4):
            k(f"s_waitcnt lgkmcnt({3-n})")
            for j in range(4): k(f"v_lshlrev_b32 v{T+j}, 16, v{CR+4*n+j}\nv_and_b32 v{CR+4*n+j}, 0xffff0000, v{CR+4*n+j}")
            for j in range(4): k(f"v_add_f32 v{CA+2*j}, v{CA+2*j}, v{T+j}\nv_add_f32 v{CA+2*j+1}, v{CA+2*j+1}, v{CR+4*n+j}")
    def w2batch(j):
        p = 0 if j < 2 else (j - 2) % 3 + 1
        half = j if j < 2 else (j - 2) // 3
        k(f"s_add_u32 s{sT0}, s{sCB}, {p}\ns_and_b32 s{sT0}, s{sT0}, 3\ns_mul_i32 s{sT0}, s{sT0}, {128*1280}\ns_add_u32 s{sT0}, s{sT0}, s{sW2}")
        if half: k(f"s_add_u32 s{sT0}, s{sT0}, {64*1280}")
        k(f"s_mul_i32 m0, s{sLW}, 5120\ns_add_u32 m0, m0, {UNIT[j]*20480}")
        for n in range(5):
            k(f"buffer_load_dwordx4 v{vW2+n}, {sr(SRD_B)}, s{sT0} offen lds")
            if n < 4: k("s_add_u32 m0, m0, 1024")
    cs = k.label("cs")
    k("s_waitcnt vmcnt(24) lgkmcnt(0)")
    stamp(k, 3)
    k("s_barrier")
    k(f"s_mov_b32 s{sC}, 0\ns_branch {cs}")
    lp = k.label()
    k(f"{lp}:")
    k("s_waitcnt vmcnt(16)\ns_barrier")
    issue()
    k(f"{cs}:")
    colsum()
    k(f"s_add_u32 s{sC}, s{sC}, 1\ns_cmp_lt_u32 s{sC}, 7\ns_cbranch_scc1 {lp}")
    k("s_waitcnt vmcnt(16)\ns_barrier")
    w2batch(0); w2batch(1)
    k(f"v_mov_b32 v{T+8}, {SCR+512}\nds_read_b64 {vr(T+10,2)}, v{T+8}")
    colsum()
    k(f"v_readfirstlane_b32 s{S_NON}, v{T+10}\nv_readfirstlane_b32 s{S_NON+1}, v{T+11}")
    k("s_waitcnt vmcnt(18)\ns_barrier")
    w2batch(2)
    colsum()
    k("s_waitcnt vmcnt(15)")
    stamp(k, 4)
    k("s_barrier")
    colsum()
    for j in range(8): k(f"ds_add_f32 v{vCw}, v{CA+j} offset:{4*j}")
    w2batch(3); w2batch(4)
    k("s_waitcnt lgkmcnt(0)\ns_barrier")
    k("s_barrier")
    w2batch(5); w2batch(6); w2batch(7)
    k("s_waitcnt vmcnt(0)")
    k("s_barrier")
    k("s_barrier")
    k(f"s_branch {lab['fin']}")

def role_Gcomp(k, lab):
    T = 16
    vXa, vWa = 4, 8
    vSt, vFl, vB3 = 12, 13, 4
    vPo = 7
    HF, HP, ACC, RW = 16, 112, 144, 224
    FX, FW = 16, 24
    B1, STG, CSV, EA, EB = 56, 60, 64, 68, 84
    PT = 14
    sT0, sCnt, sH, sHo, sP, sFh, sSt = 48, 49, 50, 51, 52, 53, 54
    g_ids(k)
    lane_vars(k)
    k(f"v_mov_b32 v{T}, 0\nv_lshlrev_b32 v{vSt}, 4, v{vLane}")
    k("s_waitcnt lgkmcnt(0)")
    k.srd(SRD_C, P_DBG, 256)
    nw = k.label()
    k(f"s_or_b32 s{sT0}, s2, s{S_WAVE}\ns_cmp_lg_u32 s{sT0}, 0\ns_cbranch_scc1 {nw}")
    k(f"s_memrealtime s[56:57]\ns_waitcnt lgkmcnt(0)\ns_or_b32 s56, s56, 1\nv_mov_b32 v{T+2}, s56\nv_mov_b32 v{T+3}, s57")
    k(f"buffer_store_dwordx2 {vr(T+2,2)}, v{T}, {sr(SRD_C)}, 0 offen sc1")
    k(f"{nw}:")
    k.srd(SRD_WS, P_WS, WS_USED)
    np_ = k.label()
    k(f"s_cmp_lg_u32 s{S_WAVE}, 1\ns_cbranch_scc1 {np_}")
    code_prefetch(k, T + 4, sT0)
    k(f"v_lshlrev_b32 v{T+4}, 20, v{vLane}\nbuffer_load_dword v{T+5}, v{T+4}, {WS}, 0 offen")
    k(f"{np_}:")
    k.srd(SRD_B, P_B1, 3072)
    k(f"s_lshl_b32 s{sT0}, s{sFB}, 8\nv_lshlrev_b32 v{T+1}, 1, v{vL}")
    for t in range(4): k(f"buffer_load_short_d16_hi v{B1+t}, v{T+1}, {sr(SRD_B)}, s{sT0} offen offset:{t*64}")
    k(f"s_lshl_b32 s{sH}, s{sRB}, 2\ns_add_u32 s{sH}, s{sH}, s{S_WAVE}")
    k(f"s_lshl_b32 s{sSt}, s{sH}, 9\ns_add_u32 s{sSt}, s{sSt}, {ST_OFF}")
    k(f"s_lshl_b32 s{sFh}, s{sKQ}, 6\ns_add_u32 s{sFh}, s{sFh}, s{sH}\ns_lshl_b32 s{sFh}, s{sFh}, 7\ns_add_u32 s{sFh}, s{sFh}, {FH}")
    k(f"s_mul_i32 s{sH}, s{sH}, 3\ns_add_u32 s{sH}, s{sH}, s{sKQ}\ns_lshl_b32 s{sH}, s{sH}, 15\ns_add_u32 s{sH}, s{sH}, {H_OFF}")
    k(f"s_lshl_b32 s{sHo}, s{sCB}, 13\ns_add_u32 s{sHo}, s{sHo}, s{sH}")
    k(f"s_lshl_b32 s{sP}, s{sKQ}, 8\ns_lshl_b32 s{sT0}, s{sRB}, 4\ns_add_u32 s{sP}, s{sP}, s{sT0}\ns_lshl_b32 s{sT0}, s{S_WAVE}, 2\ns_add_u32 s{sP}, s{sP}, s{sT0}\ns_mul_i32 s{sP}, s{sP}, 10240")
    k(f"s_mul_i32 s{sT0}, s{sCB}, 2560\ns_add_u32 s{sP}, s{sP}, s{sT0}\ns_add_u32 s{sP}, s{sP}, {P_OFF}")
    k(f"buffer_load_dword v{T+10}, v{T}, {WS}, s{sFh} offen sc1")
    k(f"v_bfe_u32 v{T+1}, v{vL}, 1, 3\nv_xor_b32 v{T+1}, v{T+1}, v{vH}\nv_lshlrev_b32 v{T+1}, 4, v{T+1}\nv_lshl_add_u32 v{T+1}, v{vL}, 7, v{T+1}")
    k(f"s_lshl_b32 s{sT0}, s{S_WAVE}, 12\nv_add_u32 v{T+1}, s{sT0}, v{T+1}")
    for u in range(4): k(f"v_xor_b32 v{vXa+u}, {u*32}, v{T+1}")
    k(f"v_bfe_u32 v{T+2}, v{vLane}, 2, 2\nv_lshl_add_u32 v{T+1}, v{vH}, 3, v{T+2}\nv_lshlrev_b32 v{T+1}, 8, v{T+1}")
    k(f"v_bfe_u32 v{T+3}, v{vLane}, 4, 1\nv_lshl_add_u32 v{T+1}, v{T+3}, 5, v{T+1}\nv_and_b32 v{T+3}, 3, v{vLane}\nv_lshl_add_u32 v{T+1}, v{T+3}, 3, v{T+1}\nv_add_u32 v{T+1}, 16384, v{T+1}")
    for i in range(4): k(f"v_xor_b32 v{T+3}, {i}, v{T+2}\nv_lshl_add_u32 v{vWa+i}, v{T+3}, 6, v{T+1}")
    for i in range(64): k(f"v_mov_b32 v{ACC+i}, 0")
    k(f"v_lshlrev_b32 v{vFl}, 4, v{vL}")
    get_nonce(k, T, PT)
    k(f"v_mov_b32 v{T+1}, {SCR+512}\nds_write_b64 v{T+1}, {vr(PT,2)}")
    stamp(k, 1)
    def reads(half, u, s):
        base = 32768 if half == 0 else 0
        o = L()
        o(f"ds_read_b128 {vr(FX+4*s,4)}, v{vXa+u} offset:{base}")
        for i in range(4):
            for j2 in range(2):
                o(f"ds_read_b64_tr_b16 {vr(FW+16*s+4*i+2*j2,2)}, v{vWa+i} offset:{base + (16*u+4*j2)*256}")
        return o
    def step(s): return [f"{MF} {vr(ACC+16*i,16)}, {vr(FW+16*s+4*i,4)}, {vr(FX+4*s,4)}, {vr(ACC+16*i,16)}" for i in range(4)]
    k(f"s_mov_b32 s{sCnt}, 0\ns_waitcnt lgkmcnt(0)\ns_barrier")
    stamp(k, 2)
    for x in reads(0, 0, 0): k(x)
    loop = k.label(); last = k.label()
    k(f"{loop}:")
    k(f"buffer_load_dwordx4 {vr(STG,4)}, v{vFl}, {WS}, s{sSt} offen sc1")
    def kstep(s, rds, waits):
        st = step(s)
        for i in range(4):
            if waits: k(f"s_waitcnt lgkmcnt({6+i})")
            k(st[i])
            for x in rds[3*i:3*i+3]: k(x)
    for half in range(2):
        for u in range(4):
            s = u & 1
            if u < 3:
                kstep(s, reads(half, u + 1, s ^ 1), True)
            else:
                k("s_waitcnt lgkmcnt(0)")
                if half == 1:
                    k(f"s_add_u32 s{sCnt}, s{sCnt}, 1\ns_cmp_eq_u32 s{sCnt}, 5\ns_cbranch_scc1 {last}")
                    for r in range(vXa, vXa + 8): k(f"v_xor_b32 v{r}, 0x10000, v{r}")
                k("s_barrier")
                kstep(s, reads(half ^ 1, 0, s ^ 1), False)
    k(f"s_branch {loop}")
    k(f"{last}:")
    k(f"v_lshlrev_b32 v{vXa}, 2, v{vL}\nv_add_u32 v{vXa}, {SCR}, v{vXa}")
    st = step(1)
    k(st[0]); k(st[1])
    k("s_barrier")
    for t in range(4): k(f"ds_read_b32 v{CSV+t}, v{vXa} offset:{t*128}")
    k(st[2]); k(st[3])
    okl = k.label(); rl = k.label()
    k(f"s_mov_b32 s{S_SPIN}, 0")
    k(f"{rl}:\ns_waitcnt vmcnt(0)")
    k(f"v_cmp_ne_u32 vcc, s{S_NON}, v{STG+1}\nv_cmp_ne_u32 s[56:57], s{S_NON}, v{STG+3}\ns_or_b64 vcc, vcc, s[56:57]\ns_cbranch_vccz {okl}")
    k(f"s_add_u32 s{S_SPIN}, s{S_SPIN}, 1\ns_cmp_ge_u32 s{S_SPIN}, {SPIN}\ns_cbranch_scc1 {okl}")
    k(f"buffer_load_dwordx4 {vr(STG,4)}, v{vFl}, {WS}, s{sSt} offen sc1\ns_branch {rl}")
    k(f"{okl}:")
    k("s_waitcnt lgkmcnt(0)\ns_barrier")
    stamp(k, 3)
    m, ia = STG, STG + 2
    t0, t1 = 88, 89
    k(f"v_cvt_pk_bf16_f32 v{EB+1}, -v{m}, v{ia}\nv_lshlrev_b32 v{t0}, 16, v{EB+1}\nv_and_b32 v{t1}, 0xffff0000, v{EB+1}")
    k(f"v_sub_f32 v{t1}, v{ia}, v{t1}\nv_add_f32 v{STG+1}, v{m}, v{t0}")
    k(f"v_cvt_pk_bf16_f32 v{EB}, v{t0}, -v{STG+1}\nv_cvt_pk_bf16_f32 v{EB+2}, v{t1}, 0\nv_mov_b32 v{EB+3}, 0")
    k(f"v_cmp_eq_u32 vcc, 0, v{vH}")
    for j in range(3): k(f"v_cndmask_b32 v{EB+j}, 0, v{EB+j}, vcc")
    for t in range(4):
        e = EA + 4 * t
        k(f"v_cvt_pk_bf16_f32 v{e}, v{CSV+t}, v{CSV+t}\nv_lshlrev_b32 v{t0}, 16, v{e}\nv_sub_f32 v{t0}, v{CSV+t}, v{t0}")
        k(f"v_cvt_pk_bf16_f32 v{e+1}, v{t0}, v{B1+t}\nv_cvt_pk_bf16_f32 v{e+2}, v{B1+t}, 0\nv_mov_b32 v{e+3}, 0")
        k(f"{MF} {vr(ACC+16*t,16)}, {vr(e,4)}, {vr(EB,4)}, {vr(ACC+16*t,16)}")
    C1, C3, IA = 90, 92, 94
    k(f"v_rcp_f32 v{t0}, v{ia}\nv_mov_b32 v{IA}, v{ia}\nv_mov_b32 v{IA+1}, v{ia}")
    k(f"v_mul_f32 v{C1}, {lit(-2.302208198)}, v{t0}\nv_mul_f32 v{t1}, v{t0}, v{t0}\nv_mul_f32 v{t1}, v{t1}, v{t0}\nv_mul_f32 v{C3}, {lit(-0.1029432397)}, v{t1}")
    k(f"v_mov_b32 v{C1+1}, v{C1}\nv_mov_b32 v{C3+1}, v{C3}")
    k(f"s_lshl_b32 s{sT0}, s{sCB}, 4\nv_mov_b32 v{vXa+1}, s{sT0}")
    G = 24
    for t in range(4):
        A = ACC + 16 * t
        P8 = range(0, 16, 2)
        for j in P8: k(f"v_pk_mul_f32 {vr(G+j,2)}, {vr(A+j,2)}, {vr(A+j,2)}")
        for j in P8: k(f"v_pk_fma_f32 {vr(G+j,2)}, {vr(G+j,2)}, {vr(C3,2)}, {vr(C1,2)}")
        for j in P8: k(f"v_pk_mul_f32 {vr(G+j,2)}, {vr(G+j,2)}, {vr(A+j,2)}")
        for j in range(16): k(f"v_exp_f32 v{G+j}, v{G+j}")
        for j in P8: k(f"v_pk_fma_f32 {vr(G+j,2)}, {vr(G+j,2)}, {vr(IA,2)}, {vr(IA,2)}")
        for j in range(16): k(f"v_rcp_f32 v{G+j}, v{G+j}")
        for j in P8: k(f"v_pk_mul_f32 {vr(G+j,2)}, {vr(G+j,2)}, {vr(A+j,2)}")
        for j in P8: k(f"v_cvt_pk_bf16_f32 v{HP+8*t+j//2}, v{G+j}, v{G+j+1}")
        if t == 2:
            k("s_waitcnt vmcnt(0)")
            flag_store(k, vXa + 1, f"s{sFh}", PT, 1)
            k(f"s_add_u32 s{sHo}, s{sHo}, 4096")
        for u in range(2):
            k(f"buffer_store_dwordx4 {vr(HP+8*t+4*u,4)}, v{vSt}, {WS}, s{sHo} offen offset:{(t&1)*2048+u*1024} sc1")
    stamp(k, 4)
    fo = vWa
    k(f"v_mov_b32 v{fo}, v{vXa+1}")
    k(f"v_bfe_u32 v{T}, v{vLane}, 2, 2\nv_lshl_add_u32 v{T}, v{vH}, 2, v{T}\nv_mul_u32_u24 v{vB3}, 320, v{T}")
    k(f"v_bfe_u32 v{T}, v{vLane}, 4, 1\nv_lshl_add_u32 v{vB3}, v{T}, 5, v{vB3}\nv_and_b32 v{T}, 3, v{vLane}\nv_lshl_add_u32 v{vB3}, v{T}, 3, v{vB3}")
    k(f"v_add_u32 v{vB3+1}, 61440, v{vB3}\nv_add_u32 v{vB3+2}, 122880, v{vB3}")
    k(f"v_mul_u32_u24 v{vPo}, 10240, v{vH}\nv_add_u32 v{vPo}, v{vPo}, v{vFl}")
    k(f"s_mov_b64 exec, 15\nbuffer_load_dwordx2 {vr(PT,2)}, v{vFl}, {WS}, s{sFh} offen sc1\ns_mov_b64 exec, -1")
    k("s_barrier")
    def hreg(j, g):
        if j < 2: return HP + 16 * j + 4 * g
        return HF + 16 * (j - 2) + 4 * g
    seq = [(j, g, t) for j in range(5) for g in range(4) for t in range(5)]
    seq += [(j, g, t) for t in range(5) for j in range(5, 8) for g in range(4)]
    def rd(n):
        j, g, t = seq[n]; u = UNIT[j]; r = RW + 4 * (n & 7)
        off = (u % 3) * 20480 + g * 5120 + t * 64
        return [f"ds_read_b64_tr_b16 {vr(r+2*j2,2)}, v{vB3+u//3} offset:{off+j2*2560}" for j2 in range(2)]
    AHEAD = 6
    for n in range(AHEAD):
        for x in rd(n): k(x)
    def hloads(js):
        for j in js:
            p = (j - 2) % 3 + 1; half = (j - 2) // 3
            k(f"s_add_u32 s{sT0}, s{sCB}, {p}\ns_and_b32 s{sT0}, s{sT0}, 3\ns_lshl_b32 s{sT0}, s{sT0}, 13\ns_add_u32 s{sT0}, s{sT0}, s{sH}")
            if half: k(f"s_add_u32 s{sT0}, s{sT0}, 4096")
            for g in range(4): k(f"buffer_load_dwordx4 {vr(hreg(j,g),4)}, v{vSt}, {WS}, s{sT0} offen offset:{g*1024} sc1")
    pend = L()
    N = len(seq)
    POLLB_ISSUE, POLLB_CHECK = 56, 76
    for n in range(N):
        j, g, t = seq[n]
        if n == 14:
            k("s_waitcnt vmcnt(0)")
            k(f"v_mov_b32 v{T}, s{S_NON}\nv_mov_b32 v{T+1}, s{S_NON+1}\ns_mov_b64 exec, 1")
            k(f"buffer_store_dwordx2 {vr(T,2)}, v{fo}, {WS}, s{sFh} offen offset:8 sc1")
            k("s_mov_b64 exec, 15")
            ok = k.label()
            k(f"v_cmp_ne_u64 vcc, {sr(S_NON,2)}, {vr(PT,2)}\ns_cbranch_vccz {ok}")
            poll(k, vFl, f"s{sFh}", PT)
            k(f"{ok}:\ns_mov_b64 exec, -1")
            hloads((2, 3, 4))
            stamp(k, 5)
        if n == 40: k("s_barrier")
        if n == POLLB_ISSUE:
            k(f"s_mov_b64 exec, 15\nbuffer_load_dwordx2 {vr(PT,2)}, v{vFl}, {WS}, s{sFh} offen offset:8 sc1\ns_mov_b64 exec, -1")
        if n == POLLB_CHECK:
            poll(k, vFl, f"s{sFh}", PT, mask=15, first_issued=True, imm=8)
            hloads((5, 6, 7))
            stamp(k, 6)
        w = []
        if 40 <= n < POLLB_CHECK and t == 0:
            done = (j - 2) * 4 + g + 1
            w.append(f"vmcnt({12 - done + (1 if n >= POLLB_ISSUE else 0)})")
        if n >= 100 and t == 0:
            w.append(f"vmcnt({11 - ((j-5)*4+g)})")
        rem = min(N - 1, n + AHEAD - 1) - n
        w.append(f"lgkmcnt({2*rem})")
        k("s_waitcnt " + " ".join(w))
        first = n < 5
        k(f"{MF} {vr(ACC+16*t,16)}, {vr(hreg(j,g),4)}, {vr(RW+4*(n&7),4)}, {'0' if first else vr(ACC+16*t,16)}")
        if n + AHEAD < N:
            for x in rd(n + AHEAD): k(x)
        if n >= 100 and (n - 100) % 12 == 0 and t > 0:
            tt = t - 1
            for a in range(2):
                o = HP + 8 * (tt & 3) + 4 * a
                for jj in range(4): pend(f"v_cvt_pk_bf16_f32 v{o+jj}, v{ACC+16*tt+8*a+2*jj}, v{ACC+16*tt+8*a+2*jj+1}")
                if tt == 0 and a == 1: pend(f"s_add_u32 s{sHo}, s{sP}, 20480")
                pend(f"buffer_store_dwordx4 {vr(o,4)}, v{vPo}, {WS}, s{sP if a == 0 else sHo} offen offset:{tt*512} sc1")
        elif pend and (n - 100) % 12 >= 2:
            for _ in range(2):
                if pend: k(pend.pop(0))
    assert not pend
    for a in range(2):
        o = HF + 4 * a
        for jj in range(4): k(f"v_cvt_pk_bf16_f32 v{o+jj}, v{ACC+64+8*a+2*jj}, v{ACC+64+8*a+2*jj+1}")
        k(f"buffer_store_dwordx4 {vr(o,4)}, v{vPo}, {WS}, s{sP if a == 0 else sHo} offen offset:2048 sc1")
    k(f"s_lshl_b32 s{sT0}, s{sRB}, 2\ns_add_u32 s{sT0}, s{sT0}, s{S_WAVE}\ns_lshl_b32 s{sT0}, s{sT0}, 7\ns_add_u32 s{sT0}, s{sT0}, {FP}")
    k(f"s_lshl_b32 s{sCnt}, s{sFB}, 3\nv_mov_b32 v{fo}, s{sCnt}")
    k("s_waitcnt vmcnt(0)")
    flag_store(k, fo, f"s{sT0}", PT, 1)
    k(f"s_branch {lab['fin']}")

T_STRIDE = 4160
XS = 0
WB = 49152
TB = 98304
def role_F(k, lab):
    T = TT
    vXo, vTw, vGo, vWa, vZ, vA = 18, 19, 20, 21, 22, 23
    X, Z, D = 24, 64, 88
    vCo, SC, PT = 152, 157, 166
    PK = X
    sQH, sMQ, sRow, sT0, sT1, sGB, sFJ = 44, 45, 46, 47, 48, 49, 50
    lane_vars(k)
    k(f"s_mov_b32 s{sQH}, s{S_XCD}\ns_sub_u32 s{sMQ}, s{S_I}, 24")
    k(f"s_lshl_b32 s{sRow}, s{sQH}, 8\ns_and_b32 s{sT0}, s{S_WAVE}, 1\ns_lshl_b32 s{sT0}, s{sT0}, 7\ns_add_u32 s{sRow}, s{sRow}, s{sT0}")
    k(f"s_lshl_b32 s{sT0}, s{sMQ}, 3\ns_add_u32 s{sRow}, s{sRow}, s{sT0}\ns_and_b32 s{sT0}, s{S_WAVE}, 6\ns_add_u32 s{sRow}, s{sRow}, s{sT0}")
    k(f"s_mul_i32 s{sRow}, s{sRow}, 1280\ns_mul_i32 s{sGB}, s{S_WAVE}, 6144")
    k(f"v_lshlrev_b32 v{T}, 4, v{vLane}\nv_mov_b32 v{vZ}, 0")
    k("s_waitcnt lgkmcnt(0)")
    k.srd(SRD_X, P_X, 2621440)
    for rr in range(2):
        k(f"s_add_u32 m0, s{sGB}, {XS+rr*3072}")
        for j in range(3): k(f"buffer_load_dwordx4 v{T}, {sr(SRD_X)}, s{sRow} offen offset:{j*1024} lds")
        if rr == 0: k(f"s_add_u32 s{sRow}, s{sRow}, {64*1280}")
    k(f"s_cmp_lt_u32 s{S_WAVE}, 4\ns_cselect_b32 s{sT0}, s{P_WR}, s{P_WI}\ns_cselect_b32 s{sT1}, s{P_WR+1}, s{P_WI+1}")
    k.srd(SRD_A, sT0, 2048 * 642)
    k(f"s_lshl_b32 s{sT0}, s{sQH}, 7\ns_and_b32 s{sT1}, s{S_WAVE}, 1\ns_lshl_b32 s{sT1}, s{sT1}, 6\ns_add_u32 s{sT0}, s{sT0}, s{sT1}")
    k(f"s_lshl_b32 s{sT1}, s{sMQ}, 2\ns_add_u32 s{sT0}, s{sT0}, s{sT1}\ns_and_b32 s{sT1}, s{S_WAVE}, 2\ns_lshl_b32 s{sT1}, s{sT1}, 9\ns_add_u32 s{sT0}, s{sT0}, s{sT1}")
    k(f"s_mul_i32 s{sT0}, s{sT0}, 642")
    for rr in range(2):
        k(f"s_add_u32 m0, s{sGB}, {WB+rr*3072}")
        for j in range(3): k(f"buffer_load_dwordx4 v{T}, {sr(SRD_A)}, s{sT0} offen offset:{j*1024} lds")
        if rr == 0: k(f"s_add_u32 s{sT0}, s{sT0}, {32*642}")
    k.srd(SRD_WS, P_WS, WS_USED); k.srd(SRD_C, P_DBG, 256)
    code_prefetch(k, D + 20, sT0)
    k(f"v_lshlrev_b32 v{D+28}, 20, v{vLane}\nbuffer_load_dword v{D+29}, v{D+28}, {WS}, 0 offen")
    stamp(k, 1)
    k(f"s_call_b64 {sr(S_RET,2)}, {lab['consts']}")
    k(f"buffer_load_dwordx2 {vr(PT,2)}, v{vZ}, {sr(SRD_C)}, 0 offen sc1")
    for z in (Z + 10, Z + 11, Z + 22, Z + 23): k(f"v_mov_b32 v{z}, 0")
    k(f"v_mul_u32_u24 v{vXo}, 640, v{vH}\nv_lshl_add_u32 v{vXo}, v{vL}, 1, v{vXo}\nv_add_u32 v{vXo}, s{sGB}, v{vXo}")
    k(f"s_lshr_b32 s{sT0}, s{S_WAVE}, 1\nv_bfe_u32 v{T}, v{vLane}, 1, 2\nv_xor_b32 v{T}, s{sT0}, v{T}\nv_lshlrev_b32 v{T}, 4, v{T}")
    k(f"v_lshl_add_u32 v{vTw}, v{vLane}, 6, v{T}\ns_and_b32 s{sT0}, s{S_WAVE}, 1\ns_lshl_b32 s{sT0}, s{sT0}, 3\ns_add_u32 s{sT0}, s{sT0}, {TB}\nv_add_u32 v{vTw}, s{sT0}, v{vTw}")
    e, uv, tl = T, T + 1, T + 2
    k(f"v_and_b32 v{e}, 3, v0\nv_bfe_u32 v{uv}, v0, 2, 1\nv_lshrrev_b32 v{tl}, 3, v0")
    k(f"v_and_b32 v{T+3}, 7, v0\nv_lshlrev_b32 v{T+3}, 4, v{T+3}\nv_lshl_add_u32 v{vGo}, v{tl}, 13, v{T+3}")
    k(f"v_cmp_eq_u32 s[56:57], 1, v{uv}")
    for n in range(5):
        kk, t2, k10, ii = T + 3, T + 4, T + 5, T + 6
        k(f"v_add_u32 v{kk}, {64*n}, v{tl}\nv_sub_u32 v{t2}, 640, v{kk}")
        if n == 0:
            k(f"v_cmp_eq_u32 vcc, 0, v{kk}\nv_mov_b32 v{k10}, 320\nv_cndmask_b32 v{t2}, v{t2}, v{k10}, vcc")
        k(f"v_cndmask_b32 v{kk}, v{kk}, v{t2}, s[56:57]")
        k(f"v_mul_u32_u24 v{k10}, 6554, v{kk}\nv_lshrrev_b32 v{k10}, 16, v{k10}")
        k(f"v_mul_u32_u24 v{t2}, 10, v{k10}\nv_sub_u32 v{ii}, v{kk}, v{t2}\nv_mul_u32_u24 v{ii}, {T_STRIDE}, v{ii}")
        k(f"v_and_b32 v{t2}, 1, v{k10}\nv_lshlrev_b32 v{t2}, 5, v{t2}\nv_lshrrev_b32 v{k10}, 1, v{k10}\nv_add_u32 v{t2}, v{t2}, v{k10}")
        k(f"v_lshl_add_u32 v{ii}, v{t2}, 6, v{ii}\nv_bfe_u32 v{t2}, v{t2}, 1, 2\nv_xor_b32 v{t2}, v{t2}, v{e}\nv_lshl_add_u32 v{vCo+n}, v{t2}, 4, v{ii}\nv_add_u32 v{vCo+n}, {TB}, v{vCo+n}")
    k(f"v_lshrrev_b32 v{T+3}, 2, v0\nv_mul_u32_u24 v{vWa}, 642, v{e}\nv_lshl_add_u32 v{vWa}, v{T+3}, 1, v{vWa}\nv_add_u32 v{vWa}, {WB}, v{vWa}")
    k(f"v_mul_u32_u24 v{vA}, 12288, v{T+3}\nv_lshl_add_u32 v{vA}, v{e}, 4, v{vA}")
    k(f"s_lshl_b32 s{sT0}, s{sQH}, 7\ns_lshl_b32 s{sT1}, s{sMQ}, 2\ns_add_u32 s{sT0}, s{sT0}, s{sT1}\nv_add_u32 v{T+3}, s{sT0}, v{e}\nv_cvt_f32_u32 v{T+3}, v{T+3}\nv_mul_f32 v{T+3}, {lit(1/2048)}, v{T+3}")
    for r in range(4):
        k(f"v_add_f32 v{T+4}, {lit(r/64)}, v{T+3}\nv_sin_f32 v{SC+r}, v{T+4}\nv_cos_f32 v{SC+4+r}, v{T+4}")
    k(f"s_lshl_b32 s{sFJ}, s{sQH}, 3\ns_add_u32 s{sFJ}, s{sFJ}, s{sMQ}\ns_lshl_b32 s{sGB}, s{sFJ}, 7")
    stamp(k, 2)
    k("s_waitcnt vmcnt(9)")
    for p in range(2):
        for b in range(2):
            for i in range(10): k(f"ds_read_u16_d16_hi v{X+20*p+10*b+i}, v{vXo} offset:{XS+p*3072+b*1280+i*64}")
    S = D; Q = D + 4; TM = D + 8
    for r in range(4):
        k(f"s_waitcnt lgkmcnt({min(15, 30-10*r)})")
        x = X + 10 * r
        k(f"v_add_f32 v{S+r}, v{x}, v{x+1}\nv_mul_f32 v{Q+r}, v{x}, v{x}\nv_add_f32 v{TM}, v{x+2}, v{x+3}\nv_mul_f32 v{TM+1}, v{x+1}, v{x+1}")
        for i in range(2, 10, 2):
            k(f"v_fmac_f32 v{Q+r}, v{x+i}, v{x+i}\nv_fmac_f32 v{TM+1}, v{x+i+1}, v{x+i+1}")
            if i >= 4: k(f"v_add_f32 v{S+r}, v{S+r}, v{x+i}\nv_add_f32 v{TM}, v{TM}, v{x+i+1}")
        k(f"v_add_f32 v{S+r}, v{S+r}, v{TM}\nv_add_f32 v{Q+r}, v{Q+r}, v{TM+1}")
    k("s_mov_b32 s56, 0xaaaaaaaa\ns_mov_b32 s57, 0xaaaaaaaa\ns_mov_b32 s58, 0xcccccccc\ns_mov_b32 s59, 0xcccccccc")
    prs = [(S, S + 1), (S + 2, S + 3), (Q, Q + 1), (Q + 2, Q + 3)]
    for j, (a, b) in enumerate(prs): k(f"v_cndmask_b32 v{TM+j}, v{b}, v{a}, s[56:57]\nv_cndmask_b32 v{a}, v{a}, v{b}, s[56:57]")
    for j, (a, b) in enumerate(prs): k(f"v_add_f32_dpp v{a}, v{TM+j}, v{a} quad_perm:[1,0,3,2] row_mask:0xf bank_mask:0xf")
    prs = [(S, S + 2), (Q, Q + 2)]
    for j, (a, b) in enumerate(prs): k(f"v_cndmask_b32 v{TM+j}, v{b}, v{a}, s[58:59]\nv_cndmask_b32 v{a}, v{a}, v{b}, s[58:59]")
    for j, (a, b) in enumerate(prs): k(f"v_add_f32_dpp v{a}, v{TM+j}, v{a} quad_perm:[2,3,0,1] row_mask:0xf bank_mask:0xf")
    for dpp in ("row_ror:4", "row_ror:8"):
        for r in (S, Q): k(f"v_add_f32_dpp v{r}, v{r}, v{r} {dpp} row_mask:0xf bank_mask:0xf")
    for sw in ("v_permlane16_swap_b32", "v_permlane32_swap_b32"):
        for j, r in enumerate((S, Q)): k(f"v_mov_b32 v{TM+j}, v{r}")
        for j, r in enumerate((S, Q)): k(f"{sw} v{r}, v{TM+j}")
        for j, r in enumerate((S, Q)): k(f"v_add_f32 v{r}, v{r}, v{TM+j}")
    mu, var, m1, r1, ri, m2, r2, t = S, Q, S + 1, S + 2, S + 3, Q + 1, Q + 2, Q + 3
    k(f"v_mul_f32 v{mu}, {lit(1/640)}, v{mu}\nv_mul_f32 v{var}, {lit(1/640)}, v{var}\nv_fma_f32 v{var}, -v{mu}, v{mu}, v{var}\nv_max_f32 v{var}, 0, v{var}")
    k(f"v_cvt_pk_bf16_f32 v{t}, v{mu}, v{var}\nv_lshlrev_b32 v{m1}, 16, v{t}\nv_and_b32 v{r1}, 0xffff0000, v{t}")
    def rs(r):
        k(f"v_add_f32 v{r}, {lit(1e-5)}, v{r}\nv_cvt_pk_bf16_f32 v{r}, v{r}, v{r}\nv_lshlrev_b32 v{r}, 16, v{r}\nv_sqrt_f32 v{r}, v{r}")
        k(f"v_cvt_pk_bf16_f32 v{r}, v{r}, v{r}\nv_lshlrev_b32 v{r}, 16, v{r}")
    rs(r1)
    k(f"v_rcp_f32 v{ri}, v{r1}")
    nb = TM + 8
    k(f"v_mul_f32 v{nb}, -v{m1}, v{ri}".replace("v_mul_f32", "v_mul_f32_e64"))
    BS, BO = TM, TM + 4
    for r in range(4):
        k(f"v_mov_b32_dpp v{BS+r}, v{ri} quad_perm:[{r},{r},{r},{r}] row_mask:0xf bank_mask:0xf")
        k(f"v_mov_b32_dpp v{BO+r}, v{nb} quad_perm:[{r},{r},{r},{r}] row_mask:0xf bank_mask:0xf")
    def norm(p):
        o = L()
        for i in range(10):
            a, b = X + 20 * p + i, X + 20 * p + 10 + i
            o(f"v_fma_f32 v{a}, v{a}, v{BS+2*p}, v{BO+2*p}\nv_fma_f32 v{b}, v{b}, v{BS+2*p+1}, v{BO+2*p+1}")
        for i in range(10): o(f"v_cvt_pk_bf16_f32 v{Z+12*p+i}, v{X+20*p+i}, v{X+20*p+10+i}")
        return o
    for x in norm(1): k(x)
    D1 = D + 32
    st = L()
    GR = T + 4
    st(f"v_sub_f32 v{m2}, v{mu}, v{m1}\nv_mul_f32 v{m2}, v{m2}, v{ri}\nv_mul_f32 v{r2}, v{var}, v{ri}\nv_mul_f32 v{r2}, v{r2}, v{ri}")
    st(f"v_cvt_pk_bf16_f32 v{t}, v{m2}, v{r2}\nv_lshlrev_b32 v{m2}, 16, v{t}\nv_and_b32 v{r2}, 0xffff0000, v{t}")
    st(f"v_add_f32 v{r2}, {lit(1e-5)}, v{r2}\nv_cvt_pk_bf16_f32 v{r2}, v{r2}, v{r2}\nv_lshlrev_b32 v{r2}, 16, v{r2}\nv_sqrt_f32 v{r2}, v{r2}")
    st(f"v_fma_f32 v{GR}, v{m2}, v{r1}, v{m1}\nv_cvt_pk_bf16_f32 v{r2}, v{r2}, v{r2}\nv_lshlrev_b32 v{r2}, 16, v{r2}\nv_mul_f32 v{GR+2}, v{r1}, v{r2}")
    inter(k, mm2(D1, D1 + 16, Z + 12, M20R, Z + 12, M20I, 3), st + norm(0))
    get_nonce(k, vZ, PT, first_issued=True)
    k(f"s_lshl_b32 s{sT0}, s{sFJ}, 9\ns_lshr_b32 s{sT1}, s{S_WAVE}, 2\ns_lshl_b32 s{sT1}, s{sT1}, 8\ns_add_u32 s{sT0}, s{sT0}, s{sT1}")
    k(f"s_and_b32 s{sT1}, s{S_WAVE}, 1\ns_lshl_b32 s{sT1}, s{sT1}, 7\ns_add_u32 s{sT0}, s{sT0}, s{sT1}\ns_and_b32 s{sT1}, s{S_WAVE}, 2\ns_lshl_b32 s{sT1}, s{sT1}, 5\ns_add_u32 s{sT0}, s{sT0}, s{sT1}\ns_add_u32 s{sT0}, s{sT0}, {ST_OFF}")
    k(f"v_mov_b32 v{GR+1}, s{S_NON}\nv_mov_b32 v{GR+3}, s{S_NON}\nv_lshlrev_b32 v{T}, 4, v{vLane}\ns_mov_b64 exec, 15")
    k(f"buffer_store_dwordx4 {vr(GR,4)}, v{T}, {WS}, s{sT0} offen sc1\ns_mov_b64 exec, -1")
    TW = X + 32
    inter(k, mm2(D, D + 16, Z, M20R, Z, M20I, 3), twiddle(D1, D1 + 16, PK + 16, TW, False))
    inter(k, mm2(D1, D1 + 16, PK + 16, M32R, PK + 16, M32I, 4), twiddle(D, D + 16, PK, TW, False))
    for x in mm2(D, D + 16, PK, M32R, PK, M32I, 4): k(x)
    for i in range(10): k(f"v_cvt_pk_bf16_f32 v{Z+2*i+1}, v{D1+i}, v{D1+16+i}")
    for i in range(10):
        k(f"v_cvt_pk_bf16_f32 v{Z+2*i}, v{D+i}, v{D+16+i}")
        k(f"ds_write_b64 v{vTw}, {vr(Z+2*i,2)} offset:{i*T_STRIDE}")
    k("s_waitcnt lgkmcnt(0)\ns_barrier")
    stamp(k, 3)
    for n in range(5): k(f"ds_read_b128 {vr(D+4*n,4)}, v{vCo+n}")
    for n in range(5):
        k(f"s_add_u32 s{sT0}, s{sGB}, {X1_OFF + n*64*8192}\ns_waitcnt lgkmcnt({4-n})")
        k(f"buffer_store_dwordx4 {vr(D+4*n,4)}, v{vGo}, {WS}, s{sT0} offen sc1")
    vF = vGo
    WI_, WO = X, D + 24
    def wcalc(n, o):
        for r in range(4):
            for c in range(4):
                k(f"ds_read_u16_d16_hi v{WI_+4*r+c}, v{vWa} offset:{(c>>1)*24576+(c&1)*12288+r*3072+n*256}")
        for r in range(4):
            k(f"s_waitcnt lgkmcnt({12-4*r})")
            lr, hr, li, hi = [WI_ + 4 * r + c for c in range(4)]
            ur, ui, ar, ai = X + 16, X + 17, X + 18, X + 19
            k(f"v_add_f32 v{ur}, v{lr}, v{hr}\nv_add_f32 v{ui}, v{li}, v{hi}\nv_sub_f32 v{lr}, v{lr}, v{hr}\nv_sub_f32 v{li}, v{li}, v{hi}")
            k(f"v_fma_f32 v{ar}, -v{SC+r}, v{lr}, v{ur}\nv_fma_f32 v{ai}, -v{SC+r}, v{li}, v{ui}\nv_fmac_f32 v{ur}, v{SC+r}, v{lr}\nv_fmac_f32 v{ui}, v{SC+r}, v{li}")
            k(f"v_mul_f32 v{lr}, v{SC+4+r}, v{lr}\nv_mul_f32 v{li}, v{SC+4+r}, v{li}")
            k(f"v_cvt_pk_bf16_f32 v{o+r}, v{ar}, v{ai}\nv_cvt_pk_bf16_f32 v{o+4+r}, v{lr}, v{li}\nv_cvt_pk_bf16_f32 v{o+8+r}, v{ur}, v{ui}")
    def wstore(n, o):
        k(f"s_add_u32 s{sT0}, s{sT1}, {n*128*12288}")
        for c in range(3): k(f"buffer_store_dwordx4 {vr(o+4*c,4)}, v{vA}, {WS}, s{sT0} offen offset:{c*64} sc1")
    wcalc(0, WO)
    k(f"s_lshl_b32 s{sT0}, s{sFJ}, 3\nv_lshlrev_b32 v{vF}, 9, v{vLane}\nv_add_u32 v{vF}, s{sT0}, v{vF}")
    k("s_waitcnt vmcnt(0)\ns_barrier")
    def wg_flag(off):
        l = k.label()
        k(f"s_cmp_lg_u32 s{S_WAVE}, 7\ns_cbranch_scc1 {l}\ns_mov_b32 s{sT0}, {off}")
        flag_store(k, vF, f"s{sT0}", PT, "0xff")
        k(f"{l}:")
    wg_flag(FX1)
    stamp(k, 4)
    k(f"s_mul_i32 s{sT1}, s{sFJ}, 192\ns_add_u32 s{sT1}, s{sT1}, {WP_OFF}")
    wstore(0, WO)
    wcalc(1, WO + 12); wstore(1, WO + 12)
    l = k.label()
    k(f"s_cmp_gt_u32 s{S_WAVE}, 4\ns_cbranch_scc1 {l}")
    wcalc(2, WO + 24)
    k(f"s_cmp_eq_u32 s{S_WAVE}, 4\ns_cselect_b64 exec, 15, -1")
    wstore(2, WO + 24)
    k("s_mov_b64 exec, -1")
    k(f"{l}:")
    U, V, CF, UR, UI, VR, VI = 24, 40, 56, 104, 120, 136, 152
    PT2 = 16
    sT, sU, sV, sW, sSp, sRp = 51, 52, 53, 54, 55, 46
    idle = k.label("idle"); ok = k.label()
    k(f"s_mul_i32 s{sT}, s{sFJ}, 5\ns_add_u32 s{sT}, s{sT}, s{S_WAVE}")
    k(f"s_cmp_lt_u32 s{S_WAVE}, 5\ns_cbranch_scc1 {ok}\ns_cmp_eq_u32 s{sT}, 320\ns_cbranch_scc1 {ok}")
    k("s_waitcnt vmcnt(0)\ns_barrier")
    wg_flag(FWP)
    k(f"s_branch {idle}")
    k(f"{ok}:")
    gen_tw(k, vLf, 1024)
    k(f"s_lshl_b32 s{sU}, s{sT}, 13\ns_add_u32 s{sV}, s{sU}, 64\ns_mov_b32 s{sSp}, 0")
    k(f"s_cmp_eq_u32 s{sT}, 0\ns_cselect_b32 s{sV}, 0, s{sV}\ns_cselect_b32 s{sSp}, 1, s{sSp}")
    k(f"s_cmp_eq_u32 s{sT}, 320\ns_cselect_b32 s{sV}, 64, s{sV}\ns_cselect_b32 s{sU}, 64, s{sU}\ns_cselect_b32 s{sSp}, 1, s{sSp}")
    k(f"s_mul_i32 s{sW}, s{sT}, 12288\ns_add_u32 s{sW}, s{sW}, {WP_OFF}")
    vA1, vA2, vPl = vXo, vTw, vWa
    k(f"v_lshrrev_b32 v{T}, 2, v{vLane}\nv_and_b32 v{T+1}, 3, v{vLane}\nv_lshlrev_b32 v{T+1}, 4, v{T+1}")
    k(f"v_lshl_add_u32 v{vA1}, v{T}, 7, v{T+1}\nv_mul_u32_u24 v{vA2}, 192, v{T}\nv_add_u32 v{vA2}, v{vA2}, v{T+1}\nv_lshlrev_b32 v{vPl}, 3, v{vLane}")
    k(f"s_lshl_b32 s{sRp}, s{S_XCD}, 9\ns_add_u32 s{sRp}, s{sRp}, {FX1}")
    k("s_waitcnt vmcnt(0)\ns_barrier")
    poll(k, vPl, f"s{sRp}", PT2)
    stamp(k, 5)
    def ld4(dst, sb):
        for q in range(4):
            if q == 2: k(f"s_add_u32 s{sT0}, s{sb}, 4096")
            k(f"buffer_load_dwordx4 {vr(dst+4*q,4)}, v{vA1}, {WS}, s{sb if q < 2 else sT0} offen offset:{(q&1)*2048} sc1")
    ld4(U, sU); ld4(V, sV)
    k(f"s_add_u32 s{sRp}, s{sRp}, {FWP-FX1}")
    k(f"buffer_load_dwordx2 {vr(PT2,2)}, v{vPl}, {WS}, s{sRp} offen sc1")
    TW = M20R
    k("s_waitcnt vmcnt(5)")
    for x in mm2(UR, UI, U, M32R, U, M32I, 4): k(x)
    poll(k, vPl, f"s{sRp}", PT2, first_issued=True)
    for q in range(4):
        k(f"s_add_u32 s{sT0}, s{sW}, {q*3072}")
        for c in range(3): k(f"buffer_load_dwordx4 {vr(CF+16*c+4*q,4)}, v{vA2}, {WS}, s{sT0} offen offset:{c*64} sc1")
    for i in range(16): k(f"v_xor_b32 v{V+i}, 0x80000000, v{V+i}")
    inter(k, mm2(VR, VI, V, M32R, V, M32I, 4), twiddle(UR, UI, U, TW, False))
    inter(k, mm2(UR, UI, M32R, U, M32I, U, 4), twiddle(VR, VI, V, TW, False))
    for x in mm2(VR, VI, M32R, V, M32I, V, 4): k(x)
    E = M20R
    for i in range(0, 16, 2):
        if i % 4 == 0: k(f"s_waitcnt vmcnt({9 - 3*(i//4)})")
        for c in range(3):
            for d in range(2):
                k(f"v_lshlrev_b32 v{E+4*c+d}, 16, v{CF+16*c+i+d}\nv_and_b32 v{E+4*c+2+d}, 0xffff0000, v{CF+16*c+i+d}")
        ar, ai, br, bi, gr, gi, a, b, c_, d_ = [vr(E + 2 * j, 2) for j in range(10)]
        ur, ui, vr_, vi = vr(UR + i, 2), vr(UI + i, 2), vr(VR + i, 2), vr(VI + i, 2)
        NG = " neg_lo:[1,0,0] neg_hi:[1,0,0]"
        k(f"v_pk_mul_f32 {a}, {ar}, {ur}\nv_pk_mul_f32 {b}, {ar}, {ui}\nv_pk_mul_f32 {c_}, {bi}, {ur}\nv_pk_mul_f32 {d_}, {bi}, {ui}")
        k(f"v_pk_fma_f32 {a}, {ai}, {ui}, {a}{NG}\nv_pk_fma_f32 {b}, {ai}, {ur}, {b}\nv_pk_fma_f32 {c_}, {br}, {ui}, {c_}\nv_pk_fma_f32 {d_}, {br}, {ur}, {d_}{NG}")
        k(f"v_pk_fma_f32 {a}, {bi}, {vr_}, {a}{NG}\nv_pk_fma_f32 {b}, {br}, {vr_}, {b}\nv_pk_fma_f32 {c_}, {gr}, {vr_}, {c_}\nv_pk_fma_f32 {d_}, {gr}, {vi}, {d_}")
        k(f"v_pk_fma_f32 {a}, {br}, {vi}, {a}{NG}\nv_pk_fma_f32 {b}, {bi}, {vi}, {b}{NG}\nv_pk_fma_f32 {c_}, {gi}, {vi}, {c_}{NG}\nv_pk_fma_f32 {d_}, {gi}, {vr_}, {d_}")
        for d in range(2):
            k(f"v_cvt_pk_bf16_f32 v{U+i+d}, v{E+14+d}, v{E+12+d}\nv_cvt_pk_bf16_f32 v{V+i+d}, v{E+18+d}, v{E+16+d}")
    for x in mm2(UI, UR, U, M32R, U, M32I, 4): k(x)
    inter(k, mm2(VI, VR, V, M32R, V, M32I, 4), twiddle(UR, UI, U, TW, True))
    inter(k, mm2(UI, UR, M32R, U, M32I, U, 4), twiddle(VR, VI, V, TW, True))
    k(f"s_add_u32 s{sU}, s{sU}, {Y_OFF}\ns_add_u32 s{sV}, s{sV}, {Y_OFF}")
    def st4(src, sb, cv):
        o = L()
        for q in range(4):
            for i in range(4 * q, 4 * q + 4): o(cv(i))
            if q == 2: o(f"s_add_u32 s{sT0}, s{sb}, 4096")
            o(f"buffer_store_dwordx4 {vr(src+4*q,4)}, v{vA1}, {WS}, s{sb if q < 2 else sT0} offen offset:{(q&1)*2048} sc1")
        return o
    sp = k.label(); fin = k.label()
    k(f"s_cmp_lg_u32 s{sSp}, 0\ns_cbranch_scc1 {sp}")
    inter(k, mm2(VI, VR, M32R, V, M32I, V, 4), st4(U, sU, lambda i: f"v_cvt_pk_bf16_f32 v{U+i}, v{UI+i}, v{UR+i}"))
    for x in st4(CF, sV, lambda i: f"v_cvt_pk_bf16_f32 v{CF+i}, -v{VI+i}, v{VR+i}"): k(x)
    k(f"s_branch {fin}")
    k(f"{sp}:\ns_nop 3")
    for x in mm2(VI, VR, M32R, V, M32I, V, 4): k(x)
    for i in range(16):
        k(f"v_add_f32 v{UR+i}, v{UR+i}, v{VR+i}\nv_sub_f32 v{UI+i}, v{UI+i}, v{VI+i}")
        k(f"v_mul_f32 v{UR+i}, 0.5, v{UR+i}\nv_mul_f32 v{UI+i}, 0.5, v{UI+i}")
    for x in st4(U, sU, lambda i: f"v_cvt_pk_bf16_f32 v{U+i}, v{UI+i}, v{UR+i}"): k(x)
    k(f"{fin}:")
    k("s_waitcnt vmcnt(0)\ns_barrier")
    stamp(k, 6)
    k(f"s_cmp_lt_u32 s{S_WAVE}, 4\ns_cbranch_scc1 {lab['fin']}")
    k(f"s_call_b64 {sr(S_RET,2)}, {lab['consts']}")
    k(f"s_branch {lab['fin']}")
    k(f"{idle}:")
    k("s_barrier")
    wg_flag(FY)

def role_FIN(k, lab):
    T = TT
    k(f"{lab['fin']}:")
    vYo, vSa, vSb, vPa, vPb, vXa, vXb, PT = 16, 17, 18, 19, 20, 21, 22, 24
    XV, B2, PA, PB, SA, SB, O, E = 26, 36, 40, 52, 56, 60, 62, 72
    YD, DR, DI, PK = 84, 96, 112, 128
    sT0, sY, sG, sRow, sP, sLo, sHi, sRb, sFp = 44, 45, 46, 47, 48, 49, 50, 51, 52
    k("s_nop 7")
    lane_vars(k)
    k.srd(SRD_X, P_X, 2621440); k.srd(SRD_OUT, P_OUT, 2621440); k.srd(SRD_B, P_B2, 1280)
    k(f"s_lshl_b32 s{sG}, s{S_XCD}, 5\ns_add_u32 s{sG}, s{sG}, s{S_I}")
    k(f"s_lshr_b32 s{sT0}, s{S_WAVE}, 2\ns_lshl_b32 s{sT0}, s{sT0}, 6\ns_add_u32 s{sT0}, s{sT0}, 512\nv_add_u32 v{T}, s{sT0}, v{vLane}")
    k(f"v_lshlrev_b32 v{vXa}, 1, v0\nv_lshlrev_b32 v{vXb}, 1, v{T}\nv_lshlrev_b32 v{vPa}, 4, v0")
    k(f"s_and_b32 s{sRb}, s{S_WAVE}, 3\ns_lshl_b32 s{sT0}, s{sRb}, 2\nv_lshlrev_b32 v{vPb}, 4, v{T}\nv_add_u32 v{vPb}, s{sT0}, v{vPb}")
    k(f"v_mul_u32_u24 v{T+1}, 3277, v0\nv_lshrrev_b32 v{T+1}, 16, v{T+1}\nv_lshl_add_u32 v{vSa}, v{T+1}, 4, v{vPa}")
    k(f"v_mul_u32_u24 v{T+1}, 3277, v{T}\nv_lshrrev_b32 v{T+1}, 16, v{T+1}\nv_lshl_add_u32 v{vSb}, v{T+1}, 4, v{vPb}")
    k(f"s_lshl_b32 s{sRow}, s{S_XCD}, 8\ns_lshl_b32 s{sT0}, s{S_I}, 1\ns_add_u32 s{sRow}, s{sRow}, s{sT0}\ns_mul_i32 s{sRow}, s{sRow}, 1280")
    k(f"s_mul_i32 s{sRb}, s{sRb}, {64*1280}\ns_add_u32 s{sRb}, s{sRb}, s{sRow}")
    k(f"s_mul_i32 s{sP}, s{sG}, 10240\ns_add_u32 s{sP}, s{sP}, {P_OFF}")
    k(f"s_lshr_b32 s{sFp}, s{sG}, 2\ns_lshl_b32 s{sFp}, s{sFp}, 7\ns_add_u32 s{sFp}, s{sFp}, {FP}")
    xs = sr(SRD_X)
    for r in range(4):
        k(f"s_add_u32 s{sT0}, s{sRow}, {r*64*1280}")
        for b in range(2): k(f"buffer_load_short_d16_hi v{XV+2*r+b}, v{vXa}, {xs}, s{sT0} offen offset:{b*1280}")
    for b in range(2): k(f"buffer_load_short_d16_hi v{XV+8+b}, v{vXb}, {xs}, s{sRb} offen offset:{b*1280}")
    k(f"buffer_load_short_d16_hi v{B2}, v{vXa}, {sr(SRD_B)}, 0 offen\nbuffer_load_short_d16_hi v{B2+1}, v{vXb}, {sr(SRD_B)}, 0 offen")
    k(f"v_lshlrev_b32 v{T+7}, 3, v{vLane}")
    nofft = k.label(); join = k.label()
    k(f"s_cmp_lt_u32 s{S_WAVE}, 4\ns_cbranch_scc1 {nofft}")
    k(f"s_lshl_b32 s{sY}, s{S_XCD}, 10\ns_lshr_b32 s{sT0}, s{S_I}, 2\ns_lshl_b32 s{sT0}, s{sT0}, 7\ns_add_u32 s{sY}, s{sY}, s{sT0}\ns_and_b32 s{sT0}, s{S_I}, 3\ns_lshl_b32 s{sT0}, s{sT0}, 4\ns_add_u32 s{sY}, s{sY}, s{sT0}\ns_add_u32 s{sY}, s{sY}, {Y_OFF}")
    k(f"s_and_b32 s{sLo}, s{S_WAVE}, 3\ns_lshl_b32 s{sT0}, s{sLo}, 5\nv_add_u32 v{T}, s{sT0}, v{vL}\nv_sub_u32 v{T+1}, 320, v{T}")
    k(f"v_cmp_eq_u32 vcc, 1, v{vH}\nv_cndmask_b32 v{T+2}, v{T}, v{T+1}, vcc\nv_lshlrev_b32 v{T+2}, 13, v{T+2}\nv_lshl_add_u32 v{T+2}, v{vH}, 6, v{T+2}")
    k(f"v_mov_b32 v{T+3}, {128*8192}\nv_mov_b32 v{T+4}, {(-128*8192) & 0xffffffff}\nv_cndmask_b32 v{T+3}, v{T+3}, v{T+4}, vcc")
    k(f"v_add_u32 v{T+4}, v{T+2}, v{T+3}\nv_add_u32 v{T+5}, v{T+4}, v{T+3}")
    k(f"v_cmp_ne_u32 vcc, {320*8192+64}, v{T+2}\nv_cndmask_b32 v{T+2}, 64, v{T+2}, vcc")
    k(f"v_mov_b32 v{YD+10}, 0\nv_mov_b32 v{YD+11}, 0")
    k(f"s_lshl_b32 s{sT0}, s{sLo}, 2\nv_lshlrev_b32 v{T+6}, 4, v{vLane}\nv_add_u32 v{T+6}, s{sT0}, v{T+6}\nv_add_u32 v{T+6}, {Y_LDS}, v{T+6}")
    k(f"v_mul_u32_u24 v{vYo}, 336, v{vL}\nv_mul_u32_u24 v{T}, 160, v{vH}\nv_add3_u32 v{vYo}, v{vYo}, v{T}, s{sT0}")
    k(f"s_lshl_b32 s{sHi}, s{S_XCD}, 9\ns_add_u32 s{sHi}, s{sHi}, {FY}")
    poll(k, T + 7, f"s{sHi}", PT, sleep=4)
    k(f"s_lshl_b32 s{sT0}, s{sLo}, 10\ns_add_u32 m0, s{sT0}, {Y_LDS}")
    k(f"buffer_load_dwordx4 v{T+2}, {WS}, s{sY} offen sc1 lds\ns_add_u32 m0, m0, 4096")
    k(f"buffer_load_dwordx4 v{T+4}, {WS}, s{sY} offen sc1 lds")
    l = k.label()
    k(f"s_cmp_ge_u32 s{sLo}, 2\ns_cbranch_scc1 {l}\ns_add_u32 m0, m0, 4096")
    k(f"buffer_load_dwordx4 v{T+5}, {WS}, s{sY} offen sc1 lds")
    k(f"{l}:")
    k("s_waitcnt vmcnt(0)")
    stamp(k, 5)
    k("s_barrier")
    for i in range(10): k(f"ds_read_b32 v{YD+i}, v{T+6} offset:{i*1024}")
    k("s_waitcnt lgkmcnt(0)")
    for x in mm2(DI, DR, YD, M20R, YD, M20I, 3): k(x)
    for x in twiddle(DR, DI, PK, E, True): k(x)
    for x in mm2(DI, DR, PK, M32R, PK, M32I, 4): k(x)
    for i in range(10):
        k(f"v_cvt_pk_bf16_f32 v{YD+i}, v{DR+i}, v{DI+i}")
        k(f"ds_write_b32 v{vYo}, v{YD+i} offset:{i*16}")
    stamp(k, 6)
    k(f"s_branch {join}")
    k(f"{nofft}:\ns_barrier")
    k(f"{join}:")
    poll(k, T + 7, f"s{sFp}", PT, mask="0xfff", sleep=2)
    for kq in range(3):
        k(f"s_add_u32 s{sT0}, s{sP}, {kq*2621440}")
        k(f"buffer_load_dwordx4 {vr(PA+4*kq,4)}, v{vPa}, {WS}, s{sT0} offen sc1")
        k(f"buffer_load_dword v{PB+kq}, v{vPb}, {WS}, s{sT0} offen sc1")
    k(f"s_mov_b32 s{sLo}, 0x00003f80\ns_mov_b32 s{sHi}, 0x3f800000\nv_mov_b32 v{T}, {lit(2048.0*640.0)}")
    for j in range(10): k(f"v_mov_b32 v{O+j}, v{B2 + (j >= 8)}")
    k("s_waitcnt lgkmcnt(0)\ns_barrier")
    k(f"ds_read_b128 {vr(SA,4)}, v{vSa}\nds_read_b32 v{SB}, v{vSb}")
    for kq in range(3):
        k(f"s_waitcnt vmcnt({4-2*kq})")
        for j in range(10):
            src = PA + 4 * kq + j // 2 if j < 8 else PB + kq
            k(f"v_dot2c_f32_bf16 v{O+j}, s{sHi if j & 1 else sLo}, v{src}")
    for j in range(10): k(f"v_mul_f32 v{E+j}, {lit(-1.4426950408889634)}, v{O+j}")
    for j in range(10): k(f"v_exp_f32 v{E+j}, v{E+j}")
    for j in range(10): k(f"v_fma_f32 v{E+j}, v{E+j}, v{T}, v{T}")
    for j in range(10): k(f"v_rcp_f32 v{E+j}, v{E+j}")
    for j in range(10): k(f"v_mul_f32 v{O+j}, v{O+j}, v{E+j}")
    k("s_waitcnt lgkmcnt(0)")
    os_ = sr(SRD_OUT)
    for p in range(5):
        src = SA + p if p < 4 else SB
        k(f"v_lshlrev_b32 v{E+2*p}, 16, v{src}\nv_and_b32 v{E+2*p+1}, 0xffff0000, v{src}")
    for p in range(5):
        k(f"v_fmac_f32 v{XV+2*p}, v{E+2*p}, v{O+2*p}\nv_fmac_f32 v{XV+2*p+1}, v{E+2*p+1}, v{O+2*p+1}")
        k(f"v_cvt_pk_bf16_f32 v{O+2*p}, v{XV+2*p}, v{XV+2*p+1}")
        if p < 4: k(f"s_add_u32 s{sT0}, s{sRow}, {p*64*1280}")
        so = sT0 if p < 4 else sRb
        va = vXa if p < 4 else vXb
        k(f"buffer_store_short v{O+2*p}, v{va}, {os_}, s{so} offen\nbuffer_store_short_d16_hi v{O+2*p}, v{va}, {os_}, s{so} offen offset:1280")
    stamps_out(k)

def build(path, stamps=False, scrub=False, single=False):
    global STAMPS
    STAMPS = stamps
    k = K(NAME, 256, 512, lds=163840, vgpr=256, sgpr=102)
    k.label = lambda base="L", _c=[0]: (_c.__setitem__(0, _c[0] + 1), "%s_%d" % (base, _c[0]))[1]
    lab = dict(consts="L_consts", fin="L_fin")
    if STAMPS:
        for i in range(1, 8): k("s_mov_b64 s[%d:%d], 0" % (86 + 2 * i, 87 + 2 * i))
    stamp(k, 0)
    k("s_load_dwordx16 s[64:79], s[0:1], 0\ns_load_dwordx4 s[80:83], s[0:1], 64\ns_load_dwordx2 s[84:85], s[0:1], 80")
    k("s_cmp_ge_u32 s2, 256\ns_cbranch_scc1 L_done")
    k(f"v_lshrrev_b32 v1, 6, v0\ns_and_b32 s{S_XCD}, s2, 7\nv_readfirstlane_b32 s{S_WAVE}, v1\ns_lshr_b32 s{S_I}, s2, 3")
    k(f"s_cmp_ge_u32 s{S_I}, 24\ns_cbranch_scc1 L_F")
    k(f"s_cmp_lt_u32 s{S_WAVE}, 4\ns_cbranch_scc1 L_Gc")
    role_Gload(k, lab)
    consts_sub(k, lab["consts"])
    k("L_Gc:")
    role_Gcomp(k, lab)
    k("L_F:")
    role_F(k, lab)
    role_FIN(k, lab)
    k("L_done:\ns_endpgm\nkernel_end:")
    k.lines = hz.fix(k.lines)
    ks = [k]
    if scrub: ks = [scrub_kernel()] + ks
    write(path, ks, header="GFNet spectral filter x channel-MLP gate, one fused kernel; generated by tools/gen2.py")
    if single:
        s = open(path).read().replace("; @launch kernel=%s " % NAME, "; @launch ")
        open(path, "w").write(s)

if __name__ == "__main__":
    build("v2.s")
    build("v2_st.s", stamps=True, scrub=True)
    build("v2_single.s", single=True)
```

```python
import re

_rng = re.compile(r"\b([vsa])\[(\d+):(\d+)\]|\b([vsa])(\d+)\b|\b(vcc|exec|m0|scc)\b")
TRANS = ("v_exp_f32", "v_log_f32", "v_rcp_f32", "v_rsq_f32", "v_sqrt_f32", "v_sin_f32", "v_cos_f32")

def regs_of(op):
    out = []
    for m in _rng.finditer(op):
        if m.group(1): out += [(m.group(1), i) for i in range(int(m.group(2)), int(m.group(3)) + 1)]
        elif m.group(4): out.append((m.group(4), int(m.group(5))))
        else: out.append((m.group(6), 0))
    return out

def split_ops(s):
    ops = []; depth = 0; cur = ""
    for ch in s:
        if ch == "[": depth += 1
        if ch == "]": depth -= 1
        if ch == "," and depth == 0: ops.append(cur.strip()); cur = ""
        else: cur += ch
    if cur.strip(): ops.append(cur.strip())
    return ops

class Ins:
    def __init__(self, line):
        self.line = line
        t = line.split(";")[0].strip()
        self.op = t.split()[0] if t else ""
        rest = t[len(self.op):].strip()
        ops = split_ops(rest)
        self.dpp = "_dpp" in self.op or "quad_perm" in rest or "row_" in rest
        op = self.op
        self.kind = "other"; self.dst = []; self.src = []; self.srcc = []; self.ab = []; self.wide_store = []
        self.lds_dma = False
        if op.startswith("v_mfma"):
            self.kind = "mfma"; self.dst = regs_of(ops[0]); self.ab = regs_of(ops[1]) + regs_of(ops[2]); self.srcc = regs_of(ops[3].split()[0])
            self.src = self.ab + self.srcc
            self.passes = 8 if "32x32" in op else 4
        elif op.startswith("v_"):
            self.kind = "valu"
            nd = 1
            if op.startswith(("v_add_co", "v_sub_co", "v_addc_co", "v_subb_co", "v_subrev_co", "v_mad_u64")): nd = 2
            self.dst = sum((regs_of(o) for o in ops[:nd]), [])
            last = [o.split(" quad_perm")[0].split(" row_")[0].split(" op_sel")[0].split(" neg_")[0].split(" dst_sel")[0].split(" mul:")[0].split(" clamp")[0].split(" bitop3")[0] for o in ops[nd:]]
            self.src = sum((regs_of(o) for o in last), [])
            if op.startswith(("v_fmac", "v_dot2c", "v_permlane", "v_writelane", "v_pk_fmac")) or self.dpp: self.src += self.dst
            if op.startswith("v_permlane"): self.dst = self.dst + regs_of(ops[1])
            if op.startswith("v_cndmask") and len(ops) == 3: self.src.append(("vcc", 0))
        elif op.startswith("ds_"):
            self.kind = "ds"
            o = [x.split(" offset")[0] for x in ops]
            if op.startswith(("ds_read", "ds_bpermute", "ds_permute", "ds_swizzle")) or "_rtn" in op:
                self.dst = regs_of(o[0]); self.src = sum((regs_of(x) for x in o[1:]), [])
            else: self.src = sum((regs_of(x) for x in o), [])
        elif op.startswith(("buffer_", "global_")):
            self.kind = "vmem"
            o = [x.split(" offen")[0].split(" offset")[0].split(" sc")[0].split(" lds")[0].split(" nt")[0] for x in ops]
            if re.search(r"\blds\b", rest):
                self.lds_dma = True; self.src = sum((regs_of(x) for x in o), []) + [("m0", 0)]
            elif "load" in op:
                self.dst = regs_of(o[0]); self.src = sum((regs_of(x) for x in o[1:]), [])
            else:
                self.src = sum((regs_of(x) for x in o), [])
                if op.endswith(("x3", "x4")):
                    self.wide_store = regs_of(o[0]) if op.startswith("buffer") else regs_of(o[1])
        elif op.startswith("s_"):
            self.kind = "salu"
            if op.startswith(("s_nop", "s_waitcnt", "s_barrier", "s_branch", "s_cbranch", "s_endpgm", "s_sleep", "s_setprio", "s_cmp")):
                self.src = sum((regs_of(x) for x in ops), []) if op.startswith("s_cmp") else []
            else:
                self.dst = regs_of(ops[0]) if ops else []; self.src = sum((regs_of(x) for x in ops[1:]), [])
        self.states = 1
        if op == "s_nop": self.states = int(rest, 0) + 1
        self.trans = op.startswith(TRANS)
        self.dot = op.startswith("v_dot")

def need(p, c):
    n = 0
    pd = set(p.dst); cs = set(c.src); cd = set(c.dst)
    if p.kind == "valu":
        vd = {r for r in pd if r[0] in "va" and r[0] != "vcc"}
        sd = {r for r in pd if r[0] in ("s", "vcc")}
        if c.kind == "mfma" and vd & cs: n = max(n, 3 if p.dot else 2)
        if c.kind == "valu":
            if p.trans and not c.trans and vd & cs: n = max(n, 1)
            if c.op.startswith(("v_readlane", "v_readfirstlane")) and vd & cs: n = max(n, 1)
            if c.op.startswith("v_permlane") and vd & cs: n = max(n, 2)
            if c.dpp and vd & cs: n = max(n, 2)
            if sd & cs: n = max(n, 4 if c.op.startswith(("v_readlane", "v_writelane")) else 2)
            if p.dot and (vd & (cs | cd)):
                if not (c.op == p.op and not (vd & set(c.src[:-len(c.dst)] if c.op.startswith("v_dot2c") else c.src[:2]))): n = max(n, 3)
            if "sdwa" in p.op and vd & (cs | cd): n = max(n, 1)
        if c.kind in ("vmem", "ds") and p.dot and vd & cs: n = max(n, 3)
        if c.kind == "vmem" and sd & cs: n = max(n, 5)
        if c.kind == "salu" and sd & cs: n = max(n, 1)
        if c.op.startswith("s_cbranch_vcc") and ("vcc", 0) in pd: n = max(n, 0)
    if p.kind == "mfma":
        big = {4: 8, 8: 12}[p.passes]; ov = {4: 6, 8: 10}[p.passes]; war = {4: 3, 8: 7}[p.passes]
        if c.kind == "mfma":
            if pd & set(c.ab): n = max(n, big)
            if pd & set(c.srcc) and not (p.dst == c.srcc and p.passes == c.passes): n = max(n, ov)
            if pd & cd and not (pd & set(c.srcc)): n = max(n, ov)
        elif c.kind in ("valu", "vmem", "ds"):
            if pd & (cs | cd): n = max(n, big)
            if c.kind == "valu" and set(p.srcc) & cd: n = max(n, war)
    if p.kind == "vmem" and p.wide_store and set(p.wide_store) & cd:
        n = max(n, 2 if c.kind == "valu" else 1)
    if p.kind == "salu" and ("m0", 0) in pd and c.lds_dma: n = max(n, 1)
    return n

def fix(lines):
    out = []; hist = []
    added = 0
    for l in lines:
        t = l.split(";")[0].strip()
        if not t or t.endswith(":") or t.startswith("."):
            out.append(l); continue
        c = Ins(l)
        dist = 0; req = 0
        for p in reversed(hist):
            if dist >= 13: break
            r = need(p, c) - dist
            req = max(req, r)
            dist += p.states
        if req > 0:
            nop = Ins("s_nop %d" % (req - 1))
            out.append("    s_nop %d" % (req - 1)); hist.append(nop); added += 1
        out.append(l); hist.append(c)
        if len(hist) > 40: hist = hist[-20:]
    return out

def cap(lines, verbose=False):
    out = []; lg = 0; vm = 0; n1 = n2 = 0
    for l in lines:
        t = l.split(";")[0].strip()
        op = t.split()[0] if t else ""
        if op == "s_waitcnt":
            m = re.search(r"lgkmcnt\((\d+)\)", t)
            if m: lg = min(lg, int(m.group(1)))
            m = re.search(r"vmcnt\((\d+)\)", t)
            if m: vm = min(vm, int(m.group(1)))
        elif op.startswith("ds_"):
            if lg >= 15: out.append("    s_waitcnt lgkmcnt(14)"); lg = 14; n1 += 1
            lg += 1
        elif op.startswith("buffer_"):
            if vm >= 62: out.append("    s_waitcnt vmcnt(61)"); vm = 61; n2 += 1
            vm += 1
        elif op in ("s_branch", "s_endpgm", "s_setpc_b64"):
            pass
        out.append(l)
    if verbose: print("cap: inserted", n1, "lgkm and", n2, "vm waits")
    return out
```

```python
import sys, struct
sys.path.insert(0, "tools")
from asmlib import *
import hz

NAME = "recurrent_scan__spectral_gfnet__mixer_channel_mlp__prompt_kernel"
X1_S = 49152 + 384
WP_S = 8192 + 128
Y_S = 4096 + 128
X1_OFF = 0
WP_OFF = 64 * X1_S
Y_OFF = WP_OFF + 64 * X1_S
H_OFF = Y_OFF + 640 * Y_S
P_OFF = H_OFF + 768 * 10240
ST_OFF = P_OFF + 3 * 2621440
CS_OFF = ST_OFF + 32768
FX1 = CS_OFF + 196608
FW_ = FX1 + 32768
FY = FW_ + 32768
FH = FY + 16384 + 32768
FP = FH + 192 * 1024
WS_USED = FP + 64 * 2048
STAMPS = None
SPIN = 400000
CFG = dict(wsb=0, hs=8192, hfl='sc1', wlate=1, papos=0, pfG=0, flaga=24, flagb=30, w2wait=4, prepc=4, wnt='nt', rot2=0, gsleep=12, psleep=6, nrep=8, pdelay=0, pfdepth=32, order='ccc', pfF=4, prepb=2, w6start=0, pre=1, dry=1, stgslot=17, wlo=4, nch=10, nit=5, thr=0, ah1=7, xslot=29, rot=2, pfat=40, xflag=0, polla=4, pollb_i=52, pollb_c=72)
ABL = set()

def f2u(f): return struct.unpack("<I", struct.pack("<f", f))[0]
def lit(f): return "0x%08x" % f2u(f)
def vr(b, n): return "v[%d:%d]" % (b, b + n - 1)
def sr(b, n=4): return "s[%d:%d]" % (b, b + n - 1)

S_WAVE, S_XCD, S_I = 3, 4, 5
S_NON = 6
SRD_X, SRD_WS, SRD_A, SRD_B, SRD_OUT, SRD_C = 8, 12, 16, 20, 24, 28
S_RET, S_SPIN, S_G, S_QH, S_STA, S_W4 = 38, 40, 41, 42, 43, 63
P_X, P_WR, P_WI, P_W1, P_B1, P_W2, P_B2, P_OUT, P_DBG, P_WS = 64, 66, 68, 72, 74, 76, 78, 80, 82, 84
MF = "v_mfma_f32_32x32x16_bf16"
WS = sr(SRD_WS)
M20R, M20I, M32R, M32I, TC, TS = 168, 180, 192, 208, 224, 240
vLane, vL, vH, vLf, vHf, vK1f = 1, 2, 3, 4, 5, 6
TT = 8
SCR = 131072
CB = SCR
XS = CB + 256
TB = XS + 10752
FSC = 53248
UNIT = [7, 6, 5, 4, 3, 2, 1, 0]
UTAB = sum(u << (4 * i) for i, u in enumerate(UNIT))
BTAB = 0x75364210
S_ROT = 43
WBK = 0
WB = 0
WST = 65536
XB = 81920
GR, PN = 56, 14

def stamp(k, n):
    if not STAMPS: return
    if STAMPS.get("cyc0") == n: k("s_memtime s[36:37]")
    if STAMPS.get("cyc1") == n:
        k("s_memtime s[34:35]\ns_waitcnt lgkmcnt(0)\ns_sub_u32 s34, s34, s36\ns_lshr_b32 s34, s34, 3\ns_add_u32 s98, s86, s34\ns_addc_u32 s99, s87, 0")
    if n in STAMPS:
        n = STAMPS[n]
        k("s_memrealtime s[%d:%d]" % (86 + 2 * n, 87 + 2 * n))
def stamps_out(k):
    if STAMPS and STAMPS.get("dbg"):
        l = k.label()
        k(f"s_waitcnt vmcnt(0) lgkmcnt(0)\ns_memrealtime s[100:101]\ns_cmp_eq_u32 s{S_WAVE}, 0\ns_cselect_b32 s32, 8, 36\ns_cbranch_scc1 {l}\ns_cmp_lg_u32 s{S_WAVE}, 7\ns_cbranch_scc1 L_done\n{l}:")
        k.srd(SRD_C, P_DBG, 256)
        k("s_waitcnt lgkmcnt(0)\ns_mov_b64 exec, 1")
        for i in range(1, 8):
            k(f"s_sub_u32 s33, s{86+2*i}, s{S_NON}\ns_cmp_eq_u32 s{86+2*i}, 0\ns_cselect_b32 s33, 0, s33\nv_mov_b32 v4, s33\nbuffer_atomic_smax v4, off, {sr(SRD_C)}, s32 offset:{4*(i-1)} sc1\ns_nop 2")
        return
    if STAMPS:
        k("s_waitcnt vmcnt(0) lgkmcnt(0)\ns_memrealtime s[100:101]")
        stamp_store(k, 0, [86 + 2 * i for i in range(8)], P_WS, tmp_s=32, waves=8, vt=4)

class L(list):
    def __call__(self, s):
        for l in s.strip("\n").split("\n"): self.append(l.strip())

def inter(k, main, fill, lead=0):
    n = len(main); m = len(fill); done = 0
    for j in range(min(lead, m)): k(fill[j]); done += 1
    for i, x in enumerate(main):
        k(x)
        upto = lead + (m - lead) * (i + 1) // n
        while done < upto: k(fill[done]); done += 1

def idx16(i): return 8 * (i >> 2) + (i & 3)

def gen_tw(k, vKf, N):
    a, b = TT, TT + 1
    k(f"v_mul_f32 v{a}, {lit(1/N)}, v{vKf}")
    k(f"v_mul_f32 v{b}, v{a}, v{vHf}\nv_mul_f32 v{b}, 4.0, v{b}")
    for i in range(16): k(f"v_fmamk_f32 v{TS+i}, v{a}, {lit(idx16(i))}, v{b}")
    for i in range(16): k(f"v_cos_f32 v{TC+i}, v{TS+i}\nv_sin_f32 v{TS+i}, v{TS+i}")

def gen_mat(k, a, b, n, MR, MI, idx):
    for i in range(n): k(f"v_fmamk_f32 v{MI+i}, v{a}, {lit(idx(i))}, v{b}")
    C, S = TC, TC + 4
    for i0 in range(0, n, 4):
        js = list(range(i0, min(n, i0 + 4)))
        for j in js: k(f"v_cos_f32 v{C+j-i0}, v{MI+j}\nv_sin_f32 v{S+j-i0}, v{MI+j}")
        for j in js: k(f"v_cvt_pk_bf16_f32 v{MR+j}, v{C+j-i0}, v{S+j-i0}\nv_cvt_pk_bf16_f32 v{MI+j}, -v{S+j-i0}, v{C+j-i0}")

def consts_sub(k):
    k("L_consts:")
    T = TT
    k(f"v_cvt_f32_u32 v{vLf}, v{vL}\nv_cvt_f32_u32 v{vHf}, v{vH}")
    k(f"v_bfe_u32 v{T}, v{vL}, 2, 1\nv_mul_u32_u24 v{T}, 10, v{T}")
    k(f"v_lshrrev_b32 v{T+1}, 3, v{vL}\nv_lshl_add_u32 v{T}, v{T+1}, 2, v{T}")
    k(f"v_and_b32 v{T+1}, 3, v{vL}\nv_add_u32 v{T}, v{T}, v{T+1}\nv_cvt_f32_u32 v{vK1f}, v{T}")
    k(f"v_mul_f32 v{T}, {lit(1/20)}, v{vK1f}\nv_mul_f32 v{T+1}, v{vK1f}, v{vHf}\nv_mul_f32 v{T+1}, 0.5, v{T+1}")
    gen_mat(k, T, T + 1, 10, M20R, M20I, lambda i: i)
    for i in (10, 11): k(f"v_mov_b32 v{M20R+i}, 0\nv_mov_b32 v{M20I+i}, 0")
    k(f"v_mul_f32 v{T}, {lit(1/32)}, v{vLf}\nv_mul_f32 v{T+1}, v{T}, v{vHf}\nv_mul_f32 v{T+1}, 4.0, v{T+1}")
    gen_mat(k, T, T + 1, 16, M32R, M32I, idx16)
    gen_tw(k, vK1f, 640)
    k(f"s_nop 0\ns_setpc_b64 {sr(S_RET,2)}")

def mm(D, A, B, n):
    return [f"{MF} {vr(D,16)}, {vr(A+4*q,4)}, {vr(B+4*q,4)}, {'0' if q == 0 else vr(D,16)}" for q in range(n)]
def mm2(D0, D1, A0, B0, A1, B1, n):
    return [x for p in zip(mm(D0, A0, B0, n), mm(D1, A1, B1, n)) for x in p]

def twiddle(DR, DI, PK, T, inv):
    o = L()
    for i0 in range(0, 16, 4):
        R = range(i0, i0 + 4)
        A = lambda i: T + 2 * (i & 3)
        for i in R: o(f"v_mul_f32 v{A(i)}, v{DR+i}, v{TC+i}\nv_mul_f32 v{A(i)+1}, v{DI+i}, v{TC+i}")
        for i in R:
            if not inv: o(f"v_fmac_f32 v{A(i)}, v{DI+i}, v{TS+i}\nv_fma_f32 v{A(i)+1}, -v{DR+i}, v{TS+i}, v{A(i)+1}")
            else: o(f"v_fma_f32 v{A(i)}, -v{DI+i}, v{TS+i}, v{A(i)}\nv_fmac_f32 v{A(i)+1}, v{DR+i}, v{TS+i}")
        for i in R:
            if not inv: o(f"v_cvt_pk_bf16_f32 v{PK+i}, v{A(i)}, v{A(i)+1}")
            else: o(f"v_cvt_pk_bf16_f32 v{PK+i}, v{A(i)+1}, v{A(i)}")
    return o

def twiddle_pk(DR, DI, PK, T, inv):
    o = L(); NG = " neg_lo:[1,0,0] neg_hi:[1,0,0]"
    for i0 in range(0, 16, 4):
        for j in (0, 2):
            i = i0 + j
            o(f"v_pk_mul_f32 {vr(T+2*j,2)}, {vr(DR+i,2)}, {vr(TC+i,2)}\nv_pk_mul_f32 {vr(T+2*j+2,2)}, {vr(DI+i,2)}, {vr(TC+i,2)}")
        for j in (0, 2):
            i = i0 + j
            o(f"v_pk_fma_f32 {vr(T+2*j,2)}, {vr(DI+i,2)}, {vr(TS+i,2)}, {vr(T+2*j,2)}{NG if inv else ''}")
            o(f"v_pk_fma_f32 {vr(T+2*j+2,2)}, {vr(DR+i,2)}, {vr(TS+i,2)}, {vr(T+2*j+2,2)}{'' if inv else NG}")
        for j in range(4):
            re, im = T + 2 * (j & 2) + (j & 1), T + 2 * (j & 2) + 2 + (j & 1)
            o(f"v_cvt_pk_bf16_f32 v{PK+i0+j}, v{im if inv else re}, v{re if inv else im}")
    return o

def poll(k, vA, soff, vT, mask=None, sleep=2, first_issued=False, imm=0):
    lp = k.label("poll"); ex = k.label("pollx"); chk = k.label("pollc")
    if mask is not None: k(f"s_mov_b64 exec, {mask}")
    k(f"s_mov_b32 s{S_SPIN}, 0")
    if first_issued: k(f"s_branch {chk}")
    k(f"{lp}:")
    k(f"buffer_load_dwordx2 {vr(vT,2)}, v{vA}, {WS}, {soff} offen offset:{imm} sc1")
    k(f"{chk}:")
    k("s_waitcnt vmcnt(0)")
    k(f"v_cmp_ne_u64 vcc, {sr(S_NON,2)}, {vr(vT,2)}")
    k(f"s_add_u32 s{S_SPIN}, s{S_SPIN}, 1\ns_cbranch_vccz {ex}")
    if sleep: k(f"s_sleep {sleep}")
    k(f"s_cmp_lt_u32 s{S_SPIN}, {SPIN}\ns_cbranch_scc1 {lp}")
    k(f"{ex}:")
    if mask is not None: k("s_mov_b64 exec, -1")

def nonce_issue(k, vT):
    k(f"buffer_load_dwordx2 {vr(vT,2)}, off, {sr(SRD_C)}, 0 sc1")
def get_nonce(k, vT, first_issued=False):
    lp = k.label("non"); ex = k.label("nonx"); chk = k.label("nonc")
    k(f"s_mov_b32 s{S_SPIN}, 0")
    if first_issued: k(f"s_branch {chk}")
    k(f"{lp}:")
    nonce_issue(k, vT)
    k(f"{chk}:")
    k(f"s_waitcnt vmcnt(0)\nv_readfirstlane_b32 s{S_NON}, v{vT}\nv_readfirstlane_b32 s{S_NON+1}, v{vT+1}")
    k(f"s_add_u32 s{S_SPIN}, s{S_SPIN}, 1\ns_cmp_lg_u32 s{S_NON}, 0\ns_cbranch_scc1 {ex}")
    k(f"s_sleep 1\ns_cmp_lt_u32 s{S_SPIN}, {SPIN}\ns_cbranch_scc1 {lp}")
    k(f"{ex}:")

def flag_store(k, vA, soff, vT, mask, imm=0):
    k(f"v_mov_b32 v{vT}, s{S_NON}\nv_mov_b32 v{vT+1}, s{S_NON+1}\ns_mov_b64 exec, {mask}")
    k(f"buffer_store_dwordx2 {vr(vT,2)}, v{vA}, {WS}, {soff} offen offset:{imm} sc1")
    k("s_mov_b64 exec, -1")

def lds_wait(k, vCB, off, need, vT, sleep=0):
    lp = k.label("lw"); ex = k.label("lwx")
    k(f"s_mov_b32 s{S_SPIN}, 0\n{lp}:\nds_read_b128 {vr(vT,4)}, v{vCB} offset:{off}\ns_add_u32 s{S_SPIN}, s{S_SPIN}, 1\ns_waitcnt lgkmcnt(0)")
    k(f"v_min3_u32 v{vT}, v{vT}, v{vT+1}, v{vT+2}\nv_min_u32 v{vT}, v{vT}, v{vT+3}\nv_cmp_gt_u32 vcc, {need}, v{vT}\ns_cbranch_vccz {ex}")
    if sleep: k(f"s_sleep {sleep}")
    k(f"s_cmp_lt_u32 s{S_SPIN}, {SPIN*8}\ns_cbranch_scc1 {lp}\n{ex}:")

def stats_and_nonce(k, vT):
    get_nonce(k, PN, first_issued=True)
    k(f"v_mov_b32 v{GR+1}, s{S_NON}\nv_mov_b32 v{GR+3}, s{S_NON}\nv_lshlrev_b32 v{vT}, 4, v{vLane}\ns_mov_b64 exec, 3")
    k(f"buffer_store_dwordx4 {vr(GR,4)}, v{vT}, {WS}, s{S_STA} offen sc1\ns_mov_b64 exec, -1")

def sflag(k, sOff, vT):
    k(f"v_mov_b32 v{vT}, s{S_NON}\nv_mov_b32 v{vT+1}, s{S_NON+1}\ns_mov_b64 exec, 1")
    k(f"buffer_store_dwordx2 {vr(vT,2)}, off, {WS}, {sOff} sc1\ns_mov_b64 exec, -1")
def x1_flag(k, vT, sT, base=None):
    k(f"s_lshl_b32 s{sT}, s{S_G}, 3\nv_lshlrev_b32 v{vT}, 11, v{vLane}\nv_add_u32 v{vT}, s{sT}, v{vT}")
    k(f"s_lshl_b32 s{sT}, s{S_XCD}, 3\ns_and_b32 s{S_SPIN}, s{S_I}, 7\ns_add_u32 s{sT}, s{sT}, s{S_SPIN}\ns_lshl_b32 s{sT}, s{sT}, 7\ns_and_b32 s{S_SPIN}, s{S_I}, 24\ns_add_u32 s{sT}, s{sT}, s{S_SPIN}\ns_add_u32 s{sT}, s{sT}, 16384")
    k(f"v_writelane_b32 v{vT}, s{sT}, 8\ns_mov_b32 s{sT}, {FX1 if base is None else base}")
    flag_store(k, vT, f"s{sT}", PN, "0x1ff")

sRB, sKQ, sCB, sFB = 44, 45, 46, 47
def g_ids(k):
    k(f"s_mul_i32 s{sKQ}, s{S_XCD}, 6\ns_lshr_b32 s{sCB}, s{S_I}, 2\ns_add_u32 s{sKQ}, s{sKQ}, s{sCB}")
    k(f"s_and_b32 s{sRB}, s{sKQ}, 15\ns_lshr_b32 s{sKQ}, s{sKQ}, 4\ns_and_b32 s{sCB}, s{S_I}, 3")
    k(f"s_lshl_b32 s{sFB}, s{sKQ}, 2\ns_add_u32 s{sFB}, s{sFB}, s{sCB}")

sFJ = 44
def f_ids(k):
    k(f"s_lshl_b32 s{sFJ}, s{S_XCD}, 3\ns_add_u32 s{sFJ}, s{sFJ}, s{S_I}\ns_sub_u32 s{sFJ}, s{sFJ}, 24")

def role_R(k):
    T = TT
    vXo, vTw, vCB = 18, 19, 20
    X, Z, D, PK, TW, CSR = 24, 44, 60, 92, 24, 108
    sRow, sT0, sT1 = 48, 49, 50
    k(f"s_lshl_b32 s{sRow}, s{S_QH}, 8\ns_lshl_b32 s{sT0}, s{S_I}, 1\ns_add_u32 s{sRow}, s{sRow}, s{sT0}\ns_lshl_b32 s{sT0}, s{S_W4}, 6\ns_add_u32 s{sRow}, s{sRow}, s{sT0}\ns_mul_i32 s{sRow}, s{sRow}, 1280")
    k(f"s_mul_i32 s{sT1}, s{S_W4}, 2560\ns_add_u32 s{sT1}, s{sT1}, {XS}\ns_mov_b32 m0, s{sT1}\nv_lshlrev_b32 v{T}, 4, v{vLane}")
    k.srd(SRD_X, P_X, 2621440)
    for j in range(3):
        if j == 2: k("s_mov_b64 exec, 0xffffffff")
        k(f"buffer_load_dwordx4 v{T}, {sr(SRD_X)}, s{sRow} offen offset:{j*1024} lds")
    k("s_mov_b64 exec, -1")
    k.srd(SRD_C, P_DBG, 256)
    l = k.label()
    k(f"s_or_b32 s{sT0}, s2, s{S_W4}\ns_cmp_lg_u32 s{sT0}, 0\ns_cbranch_scc1 {l}")
    k(f"s_memrealtime s[56:57]\ns_waitcnt lgkmcnt(0)\ns_or_b32 s56, s56, 1\nv_mov_b32 v{PN}, s56\nv_mov_b32 v{PN+1}, s57\ns_mov_b64 exec, 1")
    k(f"buffer_store_dwordx2 {vr(PN,2)}, off, {sr(SRD_C)}, 0 sc1\ns_mov_b64 exec, -1")
    k(f"{l}:")
    l = k.label()
    k(f"s_cmp_lg_u32 s{S_WAVE}, 6\ns_cbranch_scc1 {l}\ns_cmp_ge_u32 s{S_I}, 24\ns_cbranch_scc1 {l}")
    g_ids(k)
    k.srd(SRD_A, P_W1, 640 * 3072)
    k(f"s_mul_i32 s{sT0}, s{sRB}, {40*3072}\ns_lshl_b32 s{sRow}, s{sFB}, 8\ns_add_u32 s{sT0}, s{sT0}, s{sRow}")
    k(f"v_lshrrev_b32 v{T}, 4, v{vLane}\nv_mul_u32_u24 v{T}, 3072, v{T}\nv_and_b32 v{T+1}, 15, v{vLane}\nv_lshl_add_u32 v{T}, v{T+1}, 4, v{T}")
    for j in range(10): k(f"buffer_load_dwordx4 {vr(CSR+4*j,4)}, v{T}, {sr(SRD_A)}, s{sT0} offen\ns_add_u32 s{sT0}, s{sT0}, {4*3072}")
    k(f"{l}:")
    k(f"s_setprio 1\nv_mov_b32 v{vCB}, {CB}\nv_mov_b32 v{Z+10}, 0\nv_mov_b32 v{Z+11}, 0")
    stamp(k, "R1")
    k(f"s_getpc_b64 {sr(S_RET,2)}\nL_rpc:\ns_add_u32 s{S_RET}, s{S_RET}, L_rback-L_rpc\ns_addc_u32 s{S_RET+1}, s{S_RET+1}, 0")
    consts_sub(k)
    k("L_rback:")
    k(f"v_mul_u32_u24 v{vXo}, 640, v{vH}\nv_lshl_add_u32 v{vXo}, v{vL}, 1, v{vXo}\nv_add_u32 v{vXo}, s{sT1}, v{vXo}")
    k(f"v_and_b32 v{T}, 1, v{vLane}\nv_cmp_eq_u32 s[56:57], 1, v{T}")
    k.srd(SRD_WS, P_WS, WS_USED); k.srd(SRD_A, P_W1, 640 * 3072)
    k(f"s_lshl_b32 s{sT0}, s{S_W4}, 2\ns_add_u32 s{sT0}, s{sT0}, {TB}\nv_mul_u32_u24 v{vTw}, 336, v{vL}\nv_mul_u32_u24 v{T}, 160, v{vH}\nv_add3_u32 v{vTw}, v{vTw}, v{T}, s{sT0}")
    l7 = k.label(); lj = k.label()
    k(f"s_cmp_eq_u32 s{S_WAVE}, 7\ns_cbranch_scc1 {l7}")
    dma_setup(k, True)
    k(f"s_branch {lj}\n{l7}:")
    copyout_setup(k)
    k(f"{lj}:")
    stamp(k, "R2")
    l = k.label(); l2 = k.label()
    k(f"s_waitcnt vmcnt(10)\ns_cmp_lg_u32 s{S_WAVE}, 6\ns_cbranch_scc1 {l2}\ns_cmp_lt_u32 s{S_I}, 24\ns_cbranch_scc1 {l}\n{l2}:\ns_waitcnt vmcnt(0)\n{l}:")
    stamp(k, "R3")
    for b in range(2):
        for i in range(10): k(f"ds_read_u16_d16_hi v{X+10*b+i}, v{vXo} offset:{b*1280+i*64}")
    S, Q, TM = PK, PK + 2, PK + 4
    for r in range(2):
        k(f"s_waitcnt lgkmcnt({10-10*r})")
        x = X + 10 * r
        a, b = vr(TM, 2), vr(TM + 2, 2)
        k(f"v_pk_add_f32 {a}, {vr(x,2)}, {vr(x+2,2)}\nv_pk_mul_f32 {b}, {vr(x,2)}, {vr(x,2)}")
        for i in range(2, 10, 2):
            k(f"v_pk_fma_f32 {b}, {vr(x+i,2)}, {vr(x+i,2)}, {b}")
            if i >= 4: k(f"v_pk_add_f32 {a}, {a}, {vr(x+i,2)}")
        k(f"v_add_f32 v{S+r}, v{TM}, v{TM+1}\nv_add_f32 v{Q+r}, v{TM+2}, v{TM+3}")
    prs = [(S, S + 1), (Q, Q + 1)]
    for j, (a, b) in enumerate(prs): k(f"v_cndmask_b32 v{TM+j}, v{b}, v{a}, s[56:57]\nv_cndmask_b32 v{a}, v{a}, v{b}, s[56:57]")
    red = L()
    for j, (a, b) in enumerate(prs): red(f"v_add_f32_dpp v{a}, v{TM+j}, v{a} quad_perm:[1,0,3,2] row_mask:0xf bank_mask:0xf")
    for dpp in ("quad_perm:[2,3,0,1]", "row_ror:4", "row_ror:8"):
        for r in (S, Q): red(f"v_add_f32_dpp v{r}, v{r}, v{r} {dpp} row_mask:0xf bank_mask:0xf")
    for sw in ("v_permlane16_swap_b32", "v_permlane32_swap_b32"):
        for j, r in enumerate((S, Q)): red(f"v_mov_b32 v{TM+j}, v{r}")
        for j, r in enumerate((S, Q)): red(f"{sw} v{r}, v{TM+j}")
        for j, r in enumerate((S, Q)): red(f"v_add_f32 v{r}, v{r}, v{TM+j}")
    mu, var, m1, r1, ri, m2, r2, t, nb = S, Q, S + 1, Q + 1, TM, TM + 1, TM + 2, TM + 3, TM + 4
    red(f"v_mul_f32 v{mu}, {lit(1/640)}, v{mu}\nv_mul_f32 v{var}, {lit(1/640)}, v{var}\nv_fma_f32 v{var}, -v{mu}, v{mu}, v{var}\nv_max_f32 v{var}, 0, v{var}")
    red(f"v_cvt_pk_bf16_f32 v{t}, v{mu}, v{var}\nv_and_b32 v{r1}, 0xffff0000, v{t}\nv_lshlrev_b32 v{m1}, 16, v{t}")
    red(f"v_add_f32 v{r1}, {lit(1e-5)}, v{r1}\nv_cvt_pk_bf16_f32 v{r1}, v{r1}, v{r1}\nv_lshlrev_b32 v{r1}, 16, v{r1}\nv_sqrt_f32 v{r1}, v{r1}")
    red(f"v_cvt_pk_bf16_f32 v{r1}, v{r1}, v{r1}\nv_lshlrev_b32 v{r1}, 16, v{r1}\nv_rcp_f32 v{ri}, v{r1}")
    red(f"v_mul_f32_e64 v{nb}, -v{m1}, v{ri}")
    for x in red: k(x)
    BS, BO = D, D + 4
    for j in range(4): k(f"v_mov_b32_dpp v{BS+j}, v{ri} quad_perm:[{j>>1},{j>>1},{j>>1},{j>>1}] row_mask:0xf bank_mask:0xf")
    for j in range(4): k(f"v_mov_b32_dpp v{BO+j}, v{nb} quad_perm:[{j>>1},{j>>1},{j>>1},{j>>1}] row_mask:0xf bank_mask:0xf")
    for r in range(2):
        for i in range(0, 10, 2): k(f"v_pk_fma_f32 {vr(X+10*r+i,2)}, {vr(X+10*r+i,2)}, {vr(BS+2*r,2)}, {vr(BO+2*r,2)}")
    for i in range(10): k(f"v_cvt_pk_bf16_f32 v{Z+i}, v{X+i}, v{X+10+i}")
    st = L()
    st(f"v_sub_f32 v{m2}, v{mu}, v{m1}\nv_mul_f32 v{r2}, v{var}, v{ri}\nv_mul_f32 v{m2}, v{m2}, v{ri}\nv_mul_f32 v{r2}, v{r2}, v{ri}")
    st(f"v_cvt_pk_bf16_f32 v{t}, v{m2}, v{r2}\nv_and_b32 v{r2}, 0xffff0000, v{t}\nv_lshlrev_b32 v{m2}, 16, v{t}")
    st(f"v_add_f32 v{r2}, {lit(1e-5)}, v{r2}\nv_cvt_pk_bf16_f32 v{r2}, v{r2}, v{r2}\nv_lshlrev_b32 v{r2}, 16, v{r2}\nv_sqrt_f32 v{r2}, v{r2}")
    st(f"v_fma_f32 v{GR}, v{m2}, v{r1}, v{m1}\nv_cvt_pk_bf16_f32 v{r2}, v{r2}, v{r2}\nv_lshlrev_b32 v{r2}, 16, v{r2}\nv_mul_f32 v{GR+1}, v{r1}, v{r2}")
    st(f"s_lshl_b32 s{sT0}, s{S_W4}, 4\nv_and_b32 v{T}, 1, v{vLane}\nv_lshl_add_u32 v{T}, v{T}, 3, v{vCB}\nv_add_u32 v{T}, s{sT0}, v{T}\nds_write_b64 v{T}, {vr(GR,2)} offset:128")
    inter(k, mm2(D, D + 16, Z, M20R, Z, M20I, 3), st)
    for x in twiddle_pk(D, D + 16, PK, TW, False): k(x)
    for x in mm2(D, D + 16, PK, M32R, PK, M32I, 4): k(x)
    for i in range(10):
        k(f"v_cvt_pk_bf16_f32 v{Z+i}, v{D+i}, v{D+16+i}")
        k(f"ds_write_b32 v{vTw}, v{Z+i} offset:{i*16}")
    stamp(k, "R4")
    k(f"s_lshl_b32 s{sT0}, s{S_W4}, 2\nv_add_u32 v{T}, s{sT0}, v{vCB}\nv_mov_b32 v{T+1}, 1\nds_write_b32 v{T}, v{T+1} offset:16")
    k(f"s_cmp_lg_u32 s{S_WAVE}, 7\ns_cbranch_scc1 L_n7\ns_setprio 3")
    lds_wait(k, vCB, 16, 1, X)
    stamp(k, "R5")
    copyout(k)
    k("L_n7:")

vX, vW = 152, 156
sXo, sWo, sLx, sC, sRo = 51, 52, 53, 54, 55
def dma_setup(k, loader):
    T, sT0 = TT, 49
    sh = 1 if loader else 0
    g_ids(k)
    k(f"s_lshr_b32 s{sXo}, s{sRB}, 1\ns_lshl_b32 s{sXo}, s{sXo}, 8\ns_and_b32 s{sT0}, s{sRB}, 1\ns_lshl_b32 s{sT0}, s{sT0}, 5\ns_add_u32 s{sXo}, s{sXo}, s{sT0}")
    k(f"s_lshl_b32 s{sT0}, s{S_W4}, {3+sh}\ns_add_u32 s{sXo}, s{sXo}, s{sT0}\ns_mul_i32 s{sXo}, s{sXo}, 1280")
    k(f"v_bfe_u32 v{T}, v{vLane}, 3, 1\nv_bfe_u32 v{T+1}, v{vLane}, 4, 1\nv_lshl_add_u32 v{T}, v{T+1}, 6, v{T}\nv_lshl_add_u32 v{T}, v{vH}, 1, v{T}")
    k(f"v_mul_u32_u24 v{T}, 1280, v{T}")
    k(f"v_and_b32 v{T+1}, 7, v{vLane}\nv_lshrrev_b32 v{T+2}, 4, v{vLane}\nv_xor_b32 v{T+1}, v{T+1}, v{T+2}")
    k(f"v_lshl_add_u32 v{vX}, v{T+1}, 4, v{T}\nv_xor_b32 v{vX+1}, 64, v{vX}\nv_add_u32 v{vX+1}, {128*1280}, v{vX+1}")
    k(f"v_add_u32 v{vX+2}, {4*1280}, v{vX}\nv_add_u32 v{vX+3}, {4*1280}, v{vX+1}")
    k(f"v_bfe_u32 v{T+1}, v{vLane}, 2, 2\nv_xor_b32 v{T+1}, v{T+1}, v{T+2}\nv_mul_u32_u24 v{vW}, 3072, v{T+2}\nv_lshl_add_u32 v{vW}, v{T+1}, 6, v{vW}")
    k(f"v_and_b32 v{T+3}, 3, v{vLane}\nv_lshl_add_u32 v{vW}, v{T+3}, 4, v{vW}")
    k(f"s_mul_i32 s{sWo}, s{S_W4}, {(16*3072) << sh}\ns_lshl_b32 s{sT0}, s{sFB}, 8\ns_add_u32 s{sWo}, s{sWo}, s{sT0}\ns_lshl_b32 s{sLx}, s{S_W4}, {12+sh}")
    if CFG["rot"] == 2: k(f"s_lshr_b32 s{sRo}, s{S_I}, 2\ns_add_u32 s{sRo}, s{sRo}, s{sCB}\ns_and_b32 s{sRo}, s{sRo}, 3")
    elif CFG["rot"] == 3: k(f"s_lshr_b32 s{sRo}, s{S_I}, 2\ns_lshl_b32 s{sT0}, s{sCB}, 1\ns_add_u32 s{sRo}, s{sRo}, s{sT0}\ns_and_b32 s{sRo}, s{sRo}, 7")
    else: k(f"s_mov_b32 s{sRo}, 0")
    k(f"s_mov_b32 s{sC}, {3 if loader else 0}")
def dma_chunk(k, loader):
    sA, sB, sT = 49, 50, 48
    k(f"s_and_b32 s{sA}, s{sRo}, 1\ns_cmp_lt_u32 s{sC}, 8\ns_cselect_b32 s{sA}, s{sRo}, s{sA}\ns_xor_b32 s{sA}, s{sA}, s{sC}")
    k(f"s_mul_i32 s{sB}, s{sA}, {64*3072}\ns_lshl_b32 s{sA}, s{sA}, 7\ns_add_u32 s{sA}, s{sA}, s{sXo}\ns_add_u32 s{sB}, s{sB}, s{sWo}")
    k(f"s_sub_u32 s{sT}, 1, s{sC}\ns_and_b32 s{sT}, s{sT}, 3\ns_lshl_b32 s{sT}, s{sT}, 15\ns_add_u32 m0, s{sT}, s{sLx}\ns_add_u32 s{sC}, s{sC}, 1")
    nn = 8 if loader else 4
    for n in range(nn):
        k(f"buffer_load_dwordx4 v{vX+(n&3)}, {sr(SRD_X)}, s{sA} offen lds")
        k(f"s_add_u32 m0, m0, {1024 if n < nn-1 else 16384-(nn-1)*1024}")
        if n == 3 and loader: k(f"s_add_u32 s{sA}, s{sA}, {8*1280}")
    for n in range(nn):
        k(f"buffer_load_dwordx4 v{vW}, {sr(SRD_A)}, s{sB} offen lds")
        if n < nn - 1: k(f"s_add_u32 m0, m0, 1024\ns_add_u32 s{sB}, s{sB}, {4*3072}")

vCo, vGo, vCs_, CO = 155, 152, 159, 104
def copyout_setup(k):
    T = TT
    k(f"v_mov_b32 v{T+5}, {TB}\nv_mov_b32 v{T}, 1344\nv_mov_b32 v{vCs_}, -1344\nv_cndmask_b32 v{vCs_}, v{T}, v{vCs_}, s[56:57]")
    for n in range(3):
        P, f, t, q = T + 1, T + 2, T + 3, T + 4
        k(f"v_add_u32 v{P}, {64*n}, v{vLane}\nv_mul_u32_u24 v{f}, 5462, v{P}\nv_lshrrev_b32 v{f}, 16, v{f}")
        k(f"v_mul_u32_u24 v{q}, {X1_S-192}, v{f}\nv_lshl_add_u32 v{vGo+n}, v{P}, 4, v{q}")
        k(f"v_lshrrev_b32 v{t}, 1, v{P}\nv_sub_u32 v{t}, v{t}, v{f}\nv_sub_u32 v{q}, 640, v{t}")
        k(f"v_cndmask_b32 v{t}, v{t}, v{q}, s[56:57]\nv_mul_u32_u24 v{q}, 3277, v{t}\nv_lshrrev_b32 v{q}, 16, v{q}\nv_add_u32 v{q}, v{q}, v{t}\nv_lshl_add_u32 v{vCo+n}, v{q}, 4, v{T+5}")
    k(f"v_mov_b32 v{vCo+3}, v{vCo}\ns_movk_i32 s49, {336}\ns_lshl_b32 s49, s49, 4\ns_add_u32 s49, s49, {TB}\nv_writelane_b32 v{vCo+3}, s49, 1")
def copyout(k):
    T, sT0, sT1 = TT, 48, 49
    for n in range(12):
        k(f"ds_read_b128 {vr(CO+4*n,4)}, v{vCo+3 if n == 0 else vCo+n%3}")
        if n < 9: k(f"v_add_u32 v{vCo+n%3}, v{vCo+n%3}, v{vCs_}")
    k(f"v_lshlrev_b32 v{T}, 3, v{vLane}\nv_add_u32 v{T}, {CB+128}, v{T}\nds_read_b64 {vr(T+2,2)}, v{T}\ns_mul_i32 s{sT0}, s{S_G}, 192")
    for n in range(12):
        k(f"s_waitcnt lgkmcnt({12-n})")
        if "nox1" not in ABL: k(f"buffer_store_dwordx4 {vr(CO+4*n,4)}, v{vGo+n%3}, {WS}, s{sT0} offen sc1")
        if n % 3 == 2: k(f"s_add_u32 s{sT0}, s{sT0}, {16*X1_S}")
    stamp(k, "c1")
    nonce_issue(k, PN)
    k(f"s_waitcnt lgkmcnt(0)\nv_mov_b32 v{GR}, v{T+2}\nv_mov_b32 v{GR+2}, v{T+3}")
def stats_out(k):
    T, sT0, sT1 = TT, 48, 62
    get_nonce(k, PN, first_issued=True)
    stamp(k, "c2")
    k(f"s_lshr_b32 s{sT0}, s{S_G}, 1\ns_lshl_b32 s{sT0}, s{sT0}, 8\ns_and_b32 s{sT1}, s{S_G}, 1\ns_lshl_b32 s{sT1}, s{sT1}, 6\ns_add_u32 s{sT0}, s{sT0}, s{sT1}\ns_add_u32 s{sT0}, s{sT0}, {ST_OFF}")
    k(f"v_and_b32 v{T}, 3, v{vLane}\nv_lshlrev_b32 v{T}, 4, v{T}\nv_lshrrev_b32 v{T+1}, 2, v{vLane}\nv_lshl_add_u32 v{T}, v{T+1}, 7, v{T}")
    k(f"v_mov_b32 v{GR+1}, s{S_NON}\nv_mov_b32 v{GR+3}, s{S_NON}\ns_mov_b64 exec, 0xff")
    k(f"buffer_store_dwordx4 {vr(GR,4)}, v{T}, {WS}, s{sT0} offen sc1\ns_mov_b64 exec, -1")

def role_Gload(k):
    T = TT
    vW2 = 24
    sT0, sW2, sPf, sL2, sN = 49, 58, 60, 61, 59
    k.srd(SRD_B, P_W2, 1536 * 1280)
    k(f"s_cmp_ge_u32 s{S_WAVE}, 6\ns_cbranch_scc1 L_aux")
    lp = k.label(); ent = k.label(); n3 = k.label()
    for n in range(5): k(f"v_mov_b32 v{vW2+n}, 0")
    k(f"{lp}:")
    k("s_waitcnt vmcnt(16)\ns_barrier")
    k(f"{ent}:")
    dma_chunk(k, True)
    k(f"s_cmp_lg_u32 s{sC}, 6\ns_cbranch_scc1 {n3}")
    for n in range(5):
        k(f"v_add_u32 v{T+1}, {64*n}, v{vLane}\nv_mul_u32_u24 v{T+2}, 3277, v{T+1}\nv_lshrrev_b32 v{T+2}, 16, v{T+2}")
        k(f"v_mul_u32_u24 v{T+2}, {1280-320}, v{T+2}\nv_lshl_add_u32 v{vW2+n}, v{T+1}, 4, v{T+2}")
    k(f"s_lshl_b32 s{sW2}, s{sKQ}, 9\ns_lshl_b32 s{sT0}, s{S_W4}, 4\ns_add_u32 s{sW2}, s{sW2}, s{sT0}\ns_mul_i32 s{sW2}, s{sW2}, 1280\ns_mul_i32 s{sT0}, s{sCB}, 320\ns_add_u32 s{sW2}, s{sW2}, s{sT0}\ns_mul_i32 s{sL2}, s{S_W4}, 5120")
    k(f"{n3}:")
    k(f"s_cmp_lt_u32 s{sC}, 10\ns_cbranch_scc1 {lp}")
    stamp(k, "Gl2")
    def w2step(st):
        if "now2" in ABL: return
        j, h2 = st >> 1, st & 1
        if h2 == 0:
            k(f"s_sub_u32 s{sN}, {j}, s{S_ROT}\ns_and_b32 s{sN}, s{sN}, 7\ns_lshl_b32 s{sN}, s{sN}, 2\ns_lshr_b32 s{sN}, {hex(BTAB)}, s{sN}\ns_lshl_b32 s{sT0}, s{sCB}, 1\ns_add_u32 s{sN}, s{sN}, s{sT0}\ns_and_b32 s{sN}, s{sN}, 7\ns_mul_i32 s{sN}, s{sN}, {64*1280}\ns_add_u32 s{sN}, s{sN}, s{sW2}")
        k(f"s_add_u32 m0, s{sL2}, {UNIT[j]*20480 + h2*10240}\ns_add_u32 s{sT0}, s{sN}, {32*h2*1280}")
        for n in range(5):
            k(f"buffer_load_dwordx4 v{vW2+n}, {sr(SRD_B)}, s{sT0} offen lds")
            if n < 4: k("s_add_u32 m0, m0, 1024")
    k(f"s_mul_i32 s{sPf}, s{sKQ}, {512*1280}\ns_lshl_b32 s{sT0}, s{S_I}, 1\ns_add_u32 s{sT0}, s{sT0}, s{S_W4}\ns_mul_i32 s{sT0}, s{sT0}, 13696\ns_add_u32 s{sPf}, s{sPf}, s{sT0}\nv_lshlrev_b32 v{T}, 4, v{vLane}")
    k("s_waitcnt vmcnt(16)\ns_barrier")
    def pf(n0, n1):
        for n in range(n0, n1): k(f"buffer_load_dwordx4 {vr(32+4*n,4)}, v{T}, {sr(SRD_B)}, s{sPf} offen\ns_add_u32 s{sPf}, s{sPf}, 1024")
    pf(0, 6)
    k("s_waitcnt vmcnt(6)\ns_barrier\ns_setprio 0")
    stamp(k, "Gl3")
    pf(6, 14)
    k(f"s_waitcnt vmcnt(0)\ns_sleep {CFG['w2wait']}")
    for st in range(0, 2): w2step(st)
    k("s_barrier")
    for st in range(2, 5): w2step(st)
    k("s_barrier")
    for st in range(5, 10): w2step(st)
    k("s_waitcnt vmcnt(30)\ns_barrier")
    for st in range(10, 16): w2step(st)
    stamp(k, "Gl4")
    k("s_waitcnt vmcnt(0)")
    stamp(k, "Gl5")
    k("s_barrier")
    k("s_branch L_fin")
    k("L_aux:")
    k(f"s_cmp_eq_u32 s{S_WAVE}, 6\ns_cbranch_scc1 L_prep")
    la = k.label(); lb = k.label(); lc = k.label(); ld = k.label()
    k(f"s_mov_b32 s{sN}, -1\ns_mov_b32 s{sL2}, 1")
    k(f"{la}:")
    k(f"s_cmp_eq_u32 s{sL2}, 0\ns_cbranch_scc1 {lb}\ns_mov_b32 s{sPf}, 0")
    k(f"{lc}:\ns_getreg_b32 s{sT0}, hwreg(HW_REG_IB_STS, 0, 4)\ns_cmp_eq_u32 s{sT0}, 0\ns_cbranch_scc1 {ld}")
    k(f"s_cmp_eq_u32 s{sN}, 3\ns_cbranch_scc1 {ld}\ns_sleep 1\ns_add_u32 s{sPf}, s{sPf}, 1\ns_cmp_lt_u32 s{sPf}, 4\ns_cbranch_scc1 {lc}\ns_branch {lb}")
    k(f"{ld}:\ns_mov_b32 s{sL2}, 0")
    stats_out(k)
    x1_flag(k, T + 4, sT0)
    stamp(k, "R6")
    k(f"{lb}:")
    k(f"s_barrier\ns_add_u32 s{sN}, s{sN}, 1\ns_cmp_lt_i32 s{sN}, 12\ns_cbranch_scc1 {la}")
    k("s_branch L_fin")
    k("L_prep:")
    CG, SG, BB, O, vA, vB = 24, 88, 96, 100, 20, 21
    sCs, sSt, sFh = 58, 59, 60
    k.srd(SRD_B, P_B1, 3072)
    k(f"v_lshlrev_b32 v{vA}, 4, v{vLane}\nv_lshlrev_b32 v{vB}, 2, v{vLane}\nv_lshlrev_b32 v{vB+1}, 7, v{vLane}")
    k(f"s_lshl_b32 s{sCs}, s{sFB}, 14\ns_add_u32 s{sCs}, s{sCs}, {CS_OFF}\ns_lshl_b32 s{sSt}, s{sRB}, 11\ns_add_u32 s{sSt}, s{sSt}, {ST_OFF}")
    k(f"s_lshl_b32 s{sFh}, s{sKQ}, 4\ns_add_u32 s{sFh}, s{sFh}, s{sRB}\ns_lshl_b32 s{sFh}, s{sFh}, 9\ns_add_u32 s{sFh}, s{sFh}, {FH}\ns_lshl_b32 s{sT0}, s{sFB}, 8")
    nb = CFG["prepb"]
    CA, CSR = 24, 108
    nonce_issue(k, PN)
    k(f"s_mov_b32 s56, 0x00003f80\ns_mov_b32 s57, 0x3f800000\nv_and_b32 v{T+1}, 15, v{vLane}\nv_lshlrev_b32 v{T+1}, 6, v{T+1}\nv_lshrrev_b32 v{T+2}, 4, v{vLane}\nv_lshl_add_u32 v{T+1}, v{T+2}, 4, v{T+1}\ns_lshl_b32 s61, s{sRB}, 10\ns_add_u32 s61, s61, s{sCs}")
    for j in range(8): k(f"v_mov_b32 v{CA+j}, 0")
    k("s_waitcnt vmcnt(1)")
    for j in range(40): k(f"v_dot2c_f32_bf16 v{CA+2*(j&3)}, s56, v{CSR+j}\nv_dot2c_f32_bf16 v{CA+2*(j&3)+1}, s57, v{CSR+j}")
    for j in range(4): k(f"v_permlane32_swap_b32 v{CA+j}, v{CA+4+j}")
    for j in range(4): k(f"v_add_f32 v{CA+j}, v{CA+j}, v{CA+4+j}")
    for j in range(2): k(f"v_permlane16_swap_b32 v{CA+j}, v{CA+2+j}")
    k(f"v_add_f32 v{CA}, v{CA}, v{CA+2}\nv_add_f32 v{CA+2}, v{CA+1}, v{CA+3}")
    if CFG["pfG"]:
        k.srd(SRD_OUT, P_W2, 1536 * 1280)
        k(f"s_mul_i32 s51, s{sKQ}, {512*1280}\ns_mul_i32 s52, s{S_I}, {27*1024}\ns_add_u32 s51, s51, s52")
        per = -(-27 // (nb + 1 - CFG["pfG"]))
    for c in range(nb + 1):
        k("s_barrier")
        if c == 0:
            get_nonce(k, PN, first_issued=True)
            k(f"v_mov_b32 v{CA+1}, s{S_NON}\nv_mov_b32 v{CA+3}, s{S_NON}\nbuffer_store_dwordx4 {vr(CA,4)}, v{T+1}, {WS}, s61 offen sc1")
            stamp(k, "R5")
        if CFG["pfG"] and c >= CFG["pfG"] - 1 and c < nb:
            for n in range(per): k(f"buffer_load_dwordx4 {vr(60+4*(n&7),4)}, v{vA}, {sr(SRD_OUT)}, s51 offen\ns_add_u32 s51, s51, 1024")
    k(f"buffer_load_dword v{BB}, v{vB}, {sr(SRD_B)}, s{sT0} offen")
    def gl():
        for p in range(16):
            if p % 4 == 0: k(f"s_add_u32 s61, s{sCs}, {p*1024}")
            k(f"buffer_load_dwordx4 {vr(CG+4*p,4)}, v{vA}, {WS}, s61 offen offset:{(p&3)*1024} sc1")
        for p in range(2): k(f"buffer_load_dwordx4 {vr(SG+4*p,4)}, v{vA}, {WS}, s{sSt} offen offset:{p*1024} sc1")
    gl()
    for c in range(nb + 1, CFG["prepc"] + 1): k("s_barrier")
    k(f"s_mov_b32 s{S_SPIN}, 0")
    rl = k.label(); okl = k.label()
    k(f"{rl}:\ns_waitcnt vmcnt(0)")
    k(f"v_min_u32 v{T}, v{CG+1}, v{CG+3}\nv_max_u32 v{T+1}, v{CG+1}, v{CG+3}")
    for j in range(1, 18): k(f"v_min3_u32 v{T}, v{T}, v{CG+4*j+1}, v{CG+4*j+3}\nv_max3_u32 v{T+1}, v{T+1}, v{CG+4*j+1}, v{CG+4*j+3}")
    k(f"v_cmp_ne_u32 vcc, s{S_NON}, v{T}\nv_cmp_ne_u32 s[56:57], s{S_NON}, v{T+1}\ns_or_b64 vcc, vcc, s[56:57]\ns_cbranch_vccz {okl}")
    k(f"s_add_u32 s{S_SPIN}, s{S_SPIN}, 1\ns_cmp_ge_u32 s{S_SPIN}, {SPIN}\ns_cbranch_scc1 {okl}")
    gl()
    k(f"s_branch {rl}\n{okl}:")
    for st in (32, 16, 8, 4):
        for o in range(0, st, 4):
            for d in (0, 2): k(f"v_add_f32 v{CG+o+d}, v{CG+o+d}, v{CG+st+o+d}")
    k(f"v_lshlrev_b32 v{CG+1}, 16, v{BB}\nv_and_b32 v{CG+3}, 0xffff0000, v{BB}\nv_lshlrev_b32 v{vB}, 5, v{vLane}\nv_add_u32 v{vB}, {SCR}, v{vB}\nv_add_u32 v{vA}, {SCR}, v{vA}")
    for d in range(2):
        c, b, e = CG + 2 * d, CG + 2 * d + 1, O + 4 * d
        k(f"v_cvt_pk_bf16_f32 v{e}, v{c}, v{c}\nv_lshlrev_b32 v{T}, 16, v{e}\nv_sub_f32 v{T}, v{c}, v{T}\nv_cvt_pk_bf16_f32 v{e+1}, v{T}, v{b}\nv_cvt_pk_bf16_f32 v{e+2}, v{b}, 0\nv_mov_b32 v{e+3}, 0")
        k(f"ds_write_b128 v{vB}, {vr(e,4)} offset:{16*d}")
    k("s_barrier")
    for d in range(2):
        m, ia, e, g, t0, t1 = SG + 4 * d, SG + 4 * d + 2, O + 8 + 8 * d, O + 12 + 8 * d, T, T + 1
        k(f"v_cvt_pk_bf16_f32 v{e+1}, -v{m}, v{ia}\nv_rcp_f32 v{g+3}, v{ia}\nv_lshlrev_b32 v{t0}, 16, v{e+1}\nv_and_b32 v{t1}, 0xffff0000, v{e+1}")
        k(f"v_sub_f32 v{t1}, v{ia}, v{t1}\nv_add_f32 v{m}, v{m}, v{t0}\nv_cvt_pk_bf16_f32 v{e}, v{t0}, -v{m}\nv_cvt_pk_bf16_f32 v{e+2}, v{t1}, 0\nv_mov_b32 v{e+3}, 0")
        k(f"v_mul_f32 v{g}, {lit(-2.302208198)}, v{g+3}\nv_mul_f32 v{t1}, v{g+3}, v{g+3}\nv_mul_f32 v{t1}, v{t1}, v{g+3}\nv_mul_f32 v{g+1}, {lit(-0.1029432397)}, v{t1}\nv_mov_b32 v{g+2}, v{ia}")
        k(f"ds_write_b128 v{vA}, {vr(e,4)} offset:{2048+1024*d}\nds_write_b128 v{vA}, {vr(g,4)} offset:{4096+1024*d}")
    k(f"v_mov_b32 v{T}, 0\nv_mov_b32 v{T+1}, 0\nv_mov_b32 v{T+2}, 0\nv_mov_b32 v{T+3}, 0\nv_mov_b32 v{vB}, {SCR+6144}\nds_write_b128 v{vB}, {vr(T,4)}\nds_write_b64 v{vB}, {vr(PN,2)} offset:16\ns_waitcnt lgkmcnt(0)")
    stamp(k, "R6")
    for c in range(CFG["prepc"] + 2, 13): k("s_barrier")
    k("s_branch L_fin")

class LQ:
    def __init__(self): self.q = []
    def push(self, tag): self.q.append(tag)
    def need(self, *tags):
        idx = max((i for i, t in enumerate(self.q) if t in tags), default=-1)
        if idx < 0: return None
        n = len(self.q) - 1 - idx
        self.q = self.q[idx + 1:]
        return n

def role_Gcomp(k):
    vXa, vWa = 4, 5
    vSt, vFl, PT, vEa, vEb, vGc = 12, 13, 14, 9, 10, 11
    EA, EB, GC = 224, 240, 244
    HF, HP, ACC, RW = 16, 112, 144, 224
    FX, FW = 16, 24
    STG, CSG, B1 = 60, 64, 108
    sT0, sCnt, sH, sHo, sP, sFh, sSt, sCs = 48, 49, 50, 51, 52, 53, 54, 55
    dma_setup(k, False)
    k.srd(SRD_X, P_X, 2621440); k.srd(SRD_A, P_W1, 640 * 3072)
    order = CFG["order"]
    after = None
    for ch in order:
        if ch == "W": wload(k); after = 0
        elif ch == "c":
            dma_chunk(k, False)
            if after is not None: after += 8
        elif ch == "b":
            for t in range(4): k(f"buffer_load_short_d16_hi v{B1+t}, v9, {sr(SRD_B)}, s58 offen offset:{t*64}")
            if after is not None: after += 4
        else:
            stamp(k, "Gc0")
            wrepack(k, after)
    stamp(k, "Gc0")
    k.srd(SRD_WS, P_WS, WS_USED)
    i2 = [i for i, ch in enumerate(order) if ch == "c"][1]
    b0cnt = sum({"W": 4, "c": 8, "b": 4, "r": 3}[ch] for ch in order[i2 + 1:])
    T = 56
    for j in range(4): k(f"v_mov_b32 v{T+4+j}, 0")
    su = L()
    su(f"v_bfe_u32 v{T+1}, v{vL}, 1, 3\nv_xor_b32 v{T+1}, v{T+1}, v{vH}\nv_lshlrev_b32 v{T+1}, 4, v{T+1}\nv_lshl_add_u32 v{T+1}, v{vL}, 7, v{T+1}")
    su(f"s_lshl_b32 s{sT0}, s{S_WAVE}, 12\ns_add_u32 s{sT0}, s{sT0}, 32768\nv_add_u32 v{vXa}, s{sT0}, v{T+1}")
    su(f"v_bfe_u32 v{T+2}, v{vLane}, 2, 2\nv_lshl_add_u32 v{T+1}, v{vH}, 3, v{T+2}\nv_lshlrev_b32 v{T+1}, 8, v{T+1}")
    su(f"v_bfe_u32 v{T+3}, v{vLane}, 4, 1\nv_lshl_add_u32 v{T+1}, v{T+3}, 5, v{T+1}\nv_and_b32 v{T+3}, 3, v{vLane}\nv_lshl_add_u32 v{T+1}, v{T+3}, 3, v{T+1}\nv_add_u32 v{T+1}, 16384, v{T+1}")
    for i in range(4): su(f"v_xor_b32 v{T+3}, {i}, v{T+2}\nv_lshl_add_u32 v{vWa+i}, v{T+3}, 6, v{T+1}")
    su(f"v_lshlrev_b32 v{vFl}, 4, v{vL}\nv_lshlrev_b32 v{vSt}, 4, v{vLane}\ns_mov_b32 s{sCnt}, 0")
    su(f"v_add_u32 v{vEa}, {SCR}, v{vFl}\ns_lshl_b32 s{sT0}, s{S_WAVE}, 9\nv_add_u32 v{vGc}, s{sT0}, v{vEa}\nv_mov_b32 v{vEb}, {SCR+6144-2048}\nv_cmp_eq_u32 vcc, 0, v{vH}\nv_cndmask_b32 v{vEb}, v{vEb}, v{vGc}, vcc")
    su(f"s_lshl_b32 s{sH}, s{sRB}, 2\ns_add_u32 s{sH}, s{sH}, s{S_WAVE}")
    su(f"s_lshl_b32 s{sFh}, s{sKQ}, 6\ns_add_u32 s{sFh}, s{sFh}, s{sH}\ns_lshl_b32 s{sFh}, s{sFh}, 10\ns_add_u32 s{sFh}, s{sFh}, {FH}")
    su(f"s_mul_i32 s{sH}, s{sH}, 3\ns_add_u32 s{sH}, s{sH}, s{sKQ}\ns_mul_i32 s{sH}, s{sH}, {4*CFG['hs']}\ns_add_u32 s{sH}, s{sH}, {H_OFF}")
    su(f"s_mul_i32 s{sHo}, s{sCB}, {CFG['hs']}\ns_add_u32 s{sHo}, s{sHo}, s{sH}")
    su(f"s_lshl_b32 s{sP}, s{sKQ}, 8\ns_lshl_b32 s{sT0}, s{sRB}, 4\ns_add_u32 s{sP}, s{sP}, s{sT0}\ns_lshl_b32 s{sT0}, s{S_WAVE}, 2\ns_add_u32 s{sP}, s{sP}, s{sT0}\ns_mul_i32 s{sP}, s{sP}, 10240")
    su(f"s_mul_i32 s{sT0}, s{sCB}, 2560\ns_add_u32 s{sP}, s{sP}, s{sT0}\ns_add_u32 s{sP}, s{sP}, {P_OFF}")
    inter(k, [f"{MF} {vr(ACC+16*i,16)}, {vr(T+4,4)}, {vr(T+4,4)}, 0" for i in range(4)], su)
    stamp(k, "Gc1")
    k(f"s_waitcnt vmcnt({b0cnt})\ns_barrier")
    stamp(k, "Gc2")
    AH = CFG["ah1"]
    def mf_main(s, i): return f"{MF} {vr(ACC+16*i,16)}, {vr(FW+16*s+4*i,4)}, {vr(FX+4*s,4)}, {vr(ACC+16*i,16)}"
    fill = {}
    for n in range(24):
        s_ = n & 1; u = n & 3; hb = 32768 if (n >> 2) & 1 == 0 else 0
        for i in ("x", 0, 1, 2, 3):
            need = 4 * n + (0 if i == "x" else i)
            at = max(need - AH, 4 * (n - 2) + (3 if i == "x" else i))
            if i == "x":
                ops = [(f"ds_read_b128 {vr(FX+4*s_,4)}, v{vXa}", (n, "x"))]
                d = u ^ ((u + 1) & 3); sl = 0 if u < 3 else (0x8000 if hb else 0x18000)
                fill.setdefault(at + 1, []).append(("x", n, f"v_xor_b32 v{vXa}, {hex(d*32 | sl)}, v{vXa}"))
            else:
                ops = [(f"ds_read_b64_tr_b16 {vr(FW+16*s_+4*i+2*j2,2)}, v{vWa+i} offset:{hb+u*4096+j2*1024}", (n, i)) for j2 in range(2)]
                if n & 7 == 7: fill.setdefault(at + 1, []).append(("x", n, f"v_xor_b32 v{vWa+i}, 0x10000, v{vWa+i}"))
            fill.setdefault(at, []).append(("rd", n, ops))
    loop = k.label("g1")
    def run(lo, hi, q):
        out = []
        for a in range(lo, hi):
            if a >= 0:
                n, i = a // 4, a % 4
                w = q.need((n, "x"), (n, i))
                if w is not None: out.append(f"s_waitcnt lgkmcnt({min(w,14)})")
                if "nomf" not in ABL: out.append(mf_main(n & 1, i))
                if a % 32 == 15: out.append("s_waitcnt vmcnt(0)\ns_barrier")
                if a % 32 == 31: out.append("s_barrier")
            for e in sorted(fill.get(a, []), key=lambda e: e[0] == "x"):
                if e[0] == "rd":
                    for x, tag in e[2]: out.append(x); q.push(tag)
                else: out.append(e[2])
        return out
    q = LQ()
    pro = run(-12, 0, q)
    for x in pro: k(x)
    b1_ = run(0, 32, q); b2_ = run(32, 64, q)
    assert b1_ == b2_
    k(f"{loop}:")
    for cc in (1, 2, 3, 4):
        if STAMPS and "it%d" % cc in STAMPS:
            ll = k.label()
            k(f"s_cmp_lg_u32 s{sCnt}, {cc}\ns_cbranch_scc1 {ll}"); stamp(k, "it%d" % cc); k(f"{ll}:")
    for x in b1_: k(x)
    k(f"s_add_u32 s{sCnt}, s{sCnt}, 1\ns_cmp_lt_u32 s{sCnt}, 3\ns_cbranch_scc1 {loop}")
    stamp(k, "it3")
    assert AH == 7
    q.q = [(t[0] - 16, t[1]) for t in q.q]
    G = 208
    sFo = 55
    wreg = lambda m, i: FW + [0, 16, 8, 24][m & 3] + 4 * (i & 1)
    xreg = lambda m: [16, 20, 56, 60][m & 3]
    def xx(m):
        u = m & 3; d = u ^ ((u + 1) & 3); sl = 0 if u < 3 else (0x8000 if (m >> 2) & 1 == 0 else 0x18000)
        return f"v_xor_b32 v{vXa}, {hex(d*32 | sl)}, v{vXa}"
    def rdx(m):
        k(f"ds_read_b128 {vr(xreg(m),4)}, v{vXa}"); q.push((m, "x"))
    def rdw(m, i):
        t = i + (2 if m >= 16 else 0); hb = 32768 if (m >> 2) & 1 == 0 else 0
        for j2 in range(2):
            k(f"ds_read_b64_tr_b16 {vr(wreg(m,i)+2*j2,2)}, v{vWa+t} offset:{hb+(m&3)*4096+j2*1024}"); q.push((m, i))
    def gelu(t):
        A = ACC + 16 * t
        P8 = range(0, 16, 2)
        for j in P8: k(f"v_pk_mul_f32 {vr(G+j,2)}, {vr(A+j,2)}, {vr(A+j,2)}")
        for j in P8: k(f"v_pk_fma_f32 {vr(G+j,2)}, {vr(G+j,2)}, {vr(GC+4,2)}, {vr(GC,2)}")
        for j in P8: k(f"v_pk_mul_f32 {vr(G+j,2)}, {vr(G+j,2)}, {vr(A+j,2)}")
        for j in range(16): k(f"v_exp_f32 v{G+j}, v{G+j}")
        for j in P8: k(f"v_pk_fma_f32 {vr(G+j,2)}, {vr(G+j,2)}, {vr(GC+2,2)}, {vr(GC+2,2)}")
        for j in range(16): k(f"v_rcp_f32 v{G+j}, v{G+j}")
        for j in P8: k(f"v_pk_mul_f32 {vr(G+j,2)}, {vr(G+j,2)}, {vr(A+j,2)}")
        for j in P8: k(f"v_cvt_pk_bf16_f32 v{HP+8*t+j//2}, v{G+j}, v{G+j+1}")
    def hstore(t):
        if "nohs" in ABL: return
        for u in range(2): k(f"buffer_store_dwordx4 {vr(HP+8*t+4*u,4)}, v{vSt}, {WS}, s{sHo} offen offset:{(t&1)*2048+u*1024} {CFG['hfl']}")
    def fold(t): k(f"{MF} {vr(ACC+16*t,16)}, {vr(EA+4*t,4)}, {vr(EB,4)}, {vr(ACC+16*t,16)}")
    k(xx(1)); rdx(2); rdw(2, 0); rdw(2, 1); k(xx(2))
    for m in range(32):
        if m == 16:
            stamp(k, "Gc3")
            w = q.need("e")
            if w is not None: k(f"s_waitcnt lgkmcnt({min(w,14)})")
            fold(0); fold(1)
            k(f"s_setprio 3\nv_readfirstlane_b32 s{S_NON}, v{PT}\nv_readfirstlane_b32 s{S_NON+1}, v{PT+1}\ns_lshl_b32 s{sFo}, s{sCB}, 8\ns_add_u32 s{sFo}, s{sFo}, s{sFh}")
            k(f"v_mov_b32 v{GC+4}, v{GC+1}\nv_mov_b32 v{GC+5}, v{GC+1}\nv_mov_b32 v{GC+1}, v{GC}\nv_mov_b32 v{GC+3}, v{GC+2}")
            gelu(0); hstore(0); gelu(1); hstore(1)
            k(f"s_add_u32 s{sHo}, s{sHo}, 4096")
            stamp(k, "Gc4")
        for i in range(2):
            t = i + (2 if m >= 16 else 0)
            w = q.need((m, "x"), (m, i))
            if w is not None: k(f"s_waitcnt lgkmcnt({min(w,14)})")
            k(f"{MF} {vr(ACC+16*t,16)}, {vr(wreg(m,i),4)}, {vr(xreg(m),4)}, {vr(ACC+16*t,16)}")
            if i == 0 and m in (5, 9): k("s_barrier")
            if i == 1 and m in (23, 31): k("s_barrier")
            n = m + 3
            if n < 32:
                if i == 0: rdx(n)
                rdw(n, i)
                if i == 1: k(xx(n))
                if n & 15 == 8 and i == 1: pass
            if (m + 4) & 15 == 8:
                k(f"v_xor_b32 v{vWa+t}, 0x10000, v{vWa+t}")
            if m == 10 and i == 0:
                for tt in range(4): k(f"ds_read_b128 {vr(EA+4*tt,4)}, v{vEa} offset:{tt*512}"); q.push("e")
            if m == 11 and i == 0:
                k(f"ds_read_b128 {vr(EB,4)}, v{vEb} offset:2048\nds_read_b128 {vr(GC,4)}, v{vGc} offset:4096\nv_mov_b32 v{vEa}, {SCR+6144}\nds_read_b64 {vr(PT,2)}, v{vEa} offset:16")
                for _ in range(3): q.push("e")
            if m == CFG["flaga"] and i == 1:
                k("s_waitcnt vmcnt(0)")
                sflag(k, f"s{sFo}", 10)
    fold(2); fold(3)
    stamp(k, "cg0")
    vB3, vPo, T = 4, 7, 9
    k(f"v_bfe_u32 v{T}, v{vLane}, 2, 2\nv_lshl_add_u32 v{T}, v{vH}, 2, v{T}\nv_mul_u32_u24 v{vB3}, 320, v{T}")
    k(f"v_bfe_u32 v{T}, v{vLane}, 4, 1\nv_lshl_add_u32 v{vB3}, v{T}, 5, v{vB3}\nv_and_b32 v{T}, 3, v{vLane}\nv_lshl_add_u32 v{vB3}, v{T}, 3, v{vB3}")
    k(f"v_mov_b32 v9, v{vB3}")
    k(f"v_mul_u32_u24 v{vPo}, 10240, v{vH}\nv_add_u32 v{vPo}, v{vPo}, v{vFl}\nv_lshlrev_b32 v{vFl}, 8, v{vL}")
    for p in range(1, 4):
        k(f"s_add_u32 s{55+p}, s{sCB}, {p}\ns_and_b32 s{55+p}, s{55+p}, 3\ns_mul_i32 s{55+p}, s{55+p}, {CFG['hs']}\ns_add_u32 s{55+p}, s{55+p}, s{sH}\ns_add_u32 s{58+p}, s{55+p}, 4096")
    pa = f"s_mov_b64 exec, 15\nbuffer_load_dwordx2 {vr(PT,2)}, v{vFl}, {WS}, s{sFh} offen sc1\ns_mov_b64 exec, -1"
    gelu(2)
    if CFG["papos"] == 0: k(pa)
    hstore(2); gelu(3)
    if CFG["papos"] == 1: k(pa)
    hstore(3)
    stamp(k, "Gc5")
    k("s_barrier")
    stamp(k, "Gc6")
    def hreg(j, g): return HP + 16 * j + 4 * g if j < 2 else (64 + 16 * (j - 2) + 4 * g if j < 5 else HF + 16 * (j - 5) + 4 * g)
    seq = [(j, g, t) for j in range(5) for g in range(4) for t in range(5)]
    seq += [(j, g, t) for t in range(5) for j in range(5, 8) for g in range(4)]
    seen = set()
    def rd(n):
        j, g, t = seq[n]; r = RW + 4 * (n & 7); o = []
        if j not in seen:
            seen.add(j)
            o.append(f"s_add_u32 s62, s{S_ROT}, {j}\ns_and_b32 s62, s62, 7\ns_lshl_b32 s62, s62, 2\ns_lshr_b32 s62, {hex(UTAB)}, s62\ns_and_b32 s62, s62, 7\ns_mul_i32 s62, s62, 20480\nv_add_u32 v{vB3+j%3}, s62, v9")
        return o + [f"ds_read_b64_tr_b16 {vr(r+2*j2,2)}, v{vB3+j%3} offset:{g*5120+t*64+j2*2560}" for j2 in range(2)]
    AHEAD = 6
    for n in range(AHEAD):
        for x in rd(n): k(x)
    def hloads(js):
        if "nohl" in ABL: return []
        return [f"buffer_load_dwordx4 {vr(hreg(j,g),4)}, v{vSt}, {WS}, s{54+j} offen offset:{g*1024} sc1" for j in js for g in range(4)]
    pend = L(); hp = []
    N = len(seq)
    PA_, PBI, PBC = CFG["polla"], CFG["pollb_i"], CFG["pollb_c"]
    assert PBC + 12 <= 100
    for n in range(N):
        j, g, t = seq[n]
        if n == PA_:
            ok = k.label()
            k(f"s_waitcnt vmcnt({4 - 2*CFG['papos']})\ns_mov_b64 exec, 15\nv_cmp_ne_u64 vcc, {sr(S_NON,2)}, {vr(PT,2)}\ns_cbranch_vccz {ok}")
            if "nopoll" not in ABL: poll(k, vFl, f"s{sFh}", PT)
            k(f"{ok}:\ns_mov_b64 exec, -1")
            hp = hloads((2, 3, 4))
            stamp(k, "Ga")
        if n == CFG["flagb"]:
            k(f"s_waitcnt vmcnt(0)\ns_add_u32 s{sFo}, s{sFo}, 128")
            sflag(k, f"s{sFo}", 10)
            stamp(k, "cg2")
        if n == 40 - AHEAD + 1 or n == 100 - AHEAD + 1: pass
        if n == PBI:
            k(f"s_mov_b64 exec, 15\nbuffer_load_dwordx2 {vr(PT,2)}, v{vFl}, {WS}, s{sFh} offen offset:128 sc1\ns_mov_b64 exec, -1")
        if n == PBC:
            if "nopoll" not in ABL: poll(k, vFl, f"s{sFh}", PT, mask=15, first_issued=True, imm=128)
            hp = hloads((5, 6, 7))
            stamp(k, "Gb")
        w = []
        if n >= 100 and t == 0: w.append(f"vmcnt({11 - ((j-5)*4+g)})")
        rem = min(N - 1, n + AHEAD - 1) - n
        w.append(f"lgkmcnt({2*rem})")
        k("s_waitcnt " + " ".join(w))
        k(f"{MF} {vr(ACC+16*t,16)}, {vr(hreg(j,g),4)}, {vr(RW+4*(n&7),4)}, {'0' if n < 5 else vr(ACC+16*t,16)}")
        if n + AHEAD == 40: k("s_barrier")
        if n + AHEAD < N:
            for x in rd(n + AHEAD): k(x)
        if hp: k(hp.pop(0))
        if n >= 100 and (n - 100) % 12 == 0 and t > 0:
            tt = t - 1
            for a in range(2):
                o = HP + 8 * (tt & 3) + 4 * a
                for jj in range(4): pend(f"v_cvt_pk_bf16_f32 v{o+jj}, v{ACC+16*tt+8*a+2*jj}, v{ACC+16*tt+8*a+2*jj+1}")
                if tt == 0 and a == 1: pend(f"s_add_u32 s{sHo}, s{sP}, 20480")
                if "nops" not in ABL: pend(f"buffer_store_dwordx4 {vr(o,4)}, v{vPo}, {WS}, s{sP if a == 0 else sHo} offen offset:{tt*512} sc1")
        elif pend and (n - 100) % 12 >= 2:
            for _ in range(2):
                if pend: k(pend.pop(0))
    assert not pend
    k(f"s_lshl_b32 s{sT0}, s{sRB}, 2\ns_add_u32 s{sT0}, s{sT0}, s{S_WAVE}\ns_lshl_b32 s{sT0}, s{sT0}, 11\ns_add_u32 s{sT0}, s{sT0}, {FP}")
    k(f"s_lshl_b32 s{sCnt}, s{sFB}, 7\ns_add_u32 s{sT0}, s{sT0}, s{sCnt}")
    for a in range(2):
        o = 64 + 4 * a
        for jj in range(4): k(f"v_cvt_pk_bf16_f32 v{o+jj}, v{ACC+64+8*a+2*jj}, v{ACC+64+8*a+2*jj+1}")
        k(f"buffer_store_dwordx4 {vr(o,4)}, v{vPo}, {WS}, s{sP if a == 0 else sHo} offen offset:2048 sc1")
    stamp(k, "Gd")
    k("s_waitcnt vmcnt(0)")
    sflag(k, f"s{sT0}", PT)
    stamp(k, "Ge")
    k("s_branch L_fin")

def task_setup(k):
    T = TT
    VR, VI = 136, 152
    sT, sU, sV, sSp = 52, 53, 54, 58
    vA2, vLu, vLv = 19, 16, 17
    gen_tw(k, vLf, 1024)
    k(f"s_mul_i32 s{sT}, s{sFJ}, 5\ns_add_u32 s{sT}, s{sT}, s{S_WAVE}")
    k(f"s_lshl_b32 s{sU}, s{S_WAVE}, 5\ns_add_u32 s{sV}, s{sU}, 16\ns_mov_b32 s{sSp}, 0")
    k(f"s_cmp_eq_u32 s{sT}, 0\ns_cselect_b32 s{sV}, 0, s{sV}\ns_cselect_b32 s{sSp}, 1, s{sSp}\ns_cmp_eq_u32 s{sT}, 320\ns_cselect_b32 s{sSp}, 1, s{sSp}")
    k(f"v_mul_u32_u24 v{T}, 192, v{vLane}\nv_add_u32 v{T}, {XB}, v{T}\nv_add_u32 v{vLu}, s{sU}, v{T}\nv_add_u32 v{vLv}, s{sV}, v{T}")
    k(f"v_lshrrev_b32 v{T}, 2, v{vLane}\nv_and_b32 v{T+1}, 3, v{vLane}\nv_lshlrev_b32 v{T+1}, 4, v{T+1}\nv_lshl_add_u32 v{vA2}, v{T}, 7, v{T+1}\ns_mul_i32 s55, s{S_WAVE}, {WP_S}\nv_add_u32 v{vA2}, s55, v{vA2}")
    k(f"v_mul_f32 v{T}, {lit(1/2048)}, v{vLf}\nv_fmamk_f32 v{T}, v{vHf}, {lit(1/16)}, v{T}")
    for i in range(16): k(f"v_add_f32 v{VI+i}, {lit(idx16(i)/64)}, v{T}")
    for i in range(16): k(f"v_sin_f32 v{VR+i}, v{VI+i}\nv_cos_f32 v{VI+i}, v{VI+i}")
    for i in range(16): k(f"v_cvt_pk_bf16_f32 v{88+i}, v{VR+i}, v{VI+i}")
    k(f"s_setpc_b64 {sr(S_RET,2)}")

def role_Fw(k):
    T, sT0, sGp, vCB, CSR, CA = TT, 48, 50, 12, 104, 56
    f_ids(k)
    sT1, sJ, sL = 49, 51, 52
    vWa, vGa, WI_ = 21, 22, 24
    k(f"s_lshr_b32 s{sJ}, s{sFJ}, 3\ns_lshl_b32 s{sJ}, s{sJ}, 7\ns_and_b32 s{sT0}, s{sFJ}, 7\ns_lshl_b32 s{sT0}, s{sT0}, 2\ns_add_u32 s{sJ}, s{sJ}, s{sT0}")
    k(f"s_and_b32 s{sT0}, s{S_WAVE}, 1\ns_lshl_b32 s{sT0}, s{sT0}, 6\ns_add_u32 s{sJ}, s{sJ}, s{sT0}\ns_mul_i32 s{sJ}, s{sJ}, 642\ns_and_b32 s{sJ}, s{sJ}, -16")
    k(f"s_mul_i32 m0, s{S_WAVE}, {16*656}\nv_lshlrev_b32 v{T}, 4, v{vLane}")
    k(f"s_cmp_lt_u32 s{S_WAVE}, 2\ns_cselect_b32 s{sT0}, s{P_WR}, s{P_WI}\ns_cselect_b32 s{sT1}, s{P_WR+1}, s{P_WI+1}")
    k.srd(SRD_B, sT0, 2048 * 642)
    if CFG["wlate"]:
        k(f"s_call_b64 {sr(S_RET,2)}, L_consts\nv_lshlrev_b32 v{T}, 4, v{vLane}")
        if CFG["wlate"] > 1: k(f"s_sleep {CFG['wlate']}")
    k("s_mov_b32 exec_hi, 0x1ff")
    for n in range(16):
        k(f"s_add_u32 s{sL}, s{sJ}, {((n>>3)*32 + ((n>>2)&1)*1024)*642 + (n&3)*640}")
        k(f"buffer_load_dwordx4 v{T}, {sr(SRD_B)}, s{sL} offen {CFG['wnt']} lds")
        if n < 15: k("s_add_u32 m0, m0, 656")
    k("s_mov_b64 exec, -1")
    stamp(k, "w0")
    if not CFG["wlate"]: k(f"s_call_b64 {sr(S_RET,2)}, L_consts")
    k.srd(SRD_WS, P_WS, WS_USED); k.srd(SRD_C, P_DBG, 256)
    k(f"v_and_b32 v{T}, 3, v0\nv_bfe_u32 v{T+1}, v0, 2, 1\nv_lshrrev_b32 v{T+2}, 3, v0\nv_mul_u32_u24 v{vWa}, 658, v{T}\nv_mul_u32_u24 v{T+1}, {4*656}, v{T+1}\nv_lshl_add_u32 v{vWa}, v{T+2}, 1, v{vWa}\ns_and_b32 s{sT0}, s{sFJ}, 1\ns_lshl_b32 s{sT0}, s{sT0}, 3\nv_add3_u32 v{vWa}, v{vWa}, v{T+1}, s{sT0}")
    k(f"v_and_b32 v{T}, 7, v0\nv_mul_u32_u24 v{vGa}, {WP_S}, v{T+2}\nv_lshl_add_u32 v{vGa}, v{T}, 4, v{vGa}\nv_mov_b32 v{vCB}, {CB}")
    k(f"s_lshl_b32 s{sT1}, s{sFJ}, 7\ns_add_u32 s{sT1}, s{sT1}, {WP_OFF}\ns_lshl_b32 s{sT0}, s{S_WAVE}, 2\nv_add_u32 v{T}, s{sT0}, v{vCB}\nv_mov_b32 v{T+1}, 1")
    k("s_waitcnt vmcnt(0)")
    stamp(k, "w3")
    k(f"ds_write_b32 v{T}, v{T+1} offset:48")
    lds_wait(k, vCB, 48, 1, WI_)
    stamp(k, "Gc0")
    def rd(n):
        b = WI_ + 8 * (n & 3)
        for r in range(4): k(f"ds_read_u16 v{b+r}, v{vWa} offset:{WB+r*8*656+n*64}\nds_read_u16_d16_hi v{b+4+r}, v{vWa} offset:{WB+(4+r)*8*656+n*64}")
    def wr(n):
        b = WI_ + 8 * (n & 3)
        for r in range(4): k(f"v_or_b32 v{b+r}, v{b+r}, v{b+4+r}")
        k(f"buffer_store_dwordx4 {vr(b,4)}, v{vGa}, {WS}, s{sT1} offen sc1\ns_add_u32 s{sT1}, s{sT1}, {32*WP_S}")
    rd(0)
    for n in range(10):
        rd(n + 1)
        k("s_waitcnt lgkmcnt(8)")
        wr(n)
    l = k.label()
    k(f"s_waitcnt lgkmcnt(0)\ns_cmp_lg_u32 s{S_WAVE}, 0\ns_cbranch_scc1 {l}\ns_mov_b64 exec, 0xff")
    wr(10)
    k(f"s_mov_b64 exec, -1\n{l}:")
    stamp(k, "w5")
    nonce_issue(k, PN)
    k(f"s_call_b64 {sr(S_RET,2)}, L_task")
    k(f"s_lshl_b32 s{sT0}, s{S_WAVE}, 2\nv_add_u32 v{T}, s{sT0}, v{vCB}\nv_mov_b32 v{T+1}, 1")
    get_nonce(k, PN, first_issued=True)
    k(f"ds_write_b32 v{T}, v{T+1} offset:32")
    stamp(k, "Gc2")
    k("s_branch L_Ft")
    k("L_task:")
    task_setup(k)

def role_Fhi(k):
    T = TT
    vCB, vA1, U = 20, 18, 24
    sT0, sT1 = 48, 49
    f_ids(k)
    n7 = k.label(); n6 = k.label(); pf = k.label()
    k(f"v_lshlrev_b32 v{vA1}, 4, v{vLane}\ns_cmp_lt_u32 s{S_WAVE}, 6\ns_cbranch_scc1 {n6}\ns_cmp_lg_u32 s{S_WAVE}, 7\ns_cbranch_scc1 {n7}")
    stats_out(k)
    x1_flag(k, 21, sT0)
    stamp(k, "R6")
    k(f"v_lshlrev_b32 v21, 3, v{vLane}\ns_lshl_b32 s53, s{sFJ}, 7\ns_add_u32 s53, s53, {FX1+16384}")
    poll(k, 21, "s53", U, mask=7, sleep=CFG["gsleep"])
    k(f"s_lshl_b32 s{sT0}, s{S_XCD}, 11\ns_add_u32 s{sT0}, s{sT0}, {FX1}\ns_mov_b32 s{S_SPIN}, 0")
    pl = k.label("pollx1"); go = k.label()
    k(f"{pl}:")
    k(f"buffer_load_dwordx4 {vr(U,4)}, v{vA1}, {WS}, s{sT0} offen sc1\nbuffer_load_dwordx4 {vr(U+4,4)}, v{vA1}, {WS}, s{sT0} offen offset:1024 sc1\ns_waitcnt vmcnt(0)")
    k(f"v_cmp_ne_u64 vcc, {sr(S_NON,2)}, {vr(U,2)}")
    for j in range(1, 4): k(f"v_cmp_ne_u64 s[56:57], {sr(S_NON,2)}, {vr(U+2*j,2)}\ns_or_b64 vcc, vcc, s[56:57]")
    k(f"s_add_u32 s{S_SPIN}, s{S_SPIN}, 1\ns_cbranch_vccz {go}\ns_sleep {CFG['psleep']}\ns_cmp_lt_u32 s{S_SPIN}, {SPIN}\ns_cbranch_scc1 {pl}")
    k(f"{go}:")
    k(f"s_mul_i32 s{sT0}, s{sFJ}, {X1_S}\ns_add_u32 s{sT1}, s{sT0}, 49152\ns_mov_b32 m0, {XB}\ns_mov_b32 s52, {CB+64}\ns_branch {pf}")
    k(f"{n7}:")
    get_nonce(k, PN)
    lds_wait(k, vCB, 32, 1, U, sleep=2)
    k(f"s_lshl_b32 s{sT0}, s{sFJ}, 3\nv_lshlrev_b32 v21, 9, v{vLane}\nv_add_u32 v21, s{sT0}, v21\ns_mov_b32 s{sT0}, {FW_}")
    flag_store(k, 21, f"s{sT0}", PN, "-1")
    stamp(k, "R6")
    k(f"v_lshlrev_b32 v21, 3, v{vLane}\ns_lshl_b32 s{sT0}, s{sFJ}, 9\ns_add_u32 s{sT0}, s{sT0}, {FW_}")
    poll(k, 21, f"s{sT0}", U, sleep=CFG["psleep"])
    k(f"s_mul_i32 s{sT0}, s{sFJ}, {5*WP_S}\ns_add_u32 s{sT0}, s{sT0}, {WP_OFF}\ns_cmp_eq_u32 s{sFJ}, 63\ns_cselect_b32 s{sT1}, 6, 5\ns_mul_i32 s{sT1}, s{sT1}, {WP_S}\ns_add_u32 s{sT1}, s{sT1}, s{sT0}\ns_mov_b32 m0, {WBK}\ns_mov_b32 s52, {CB+80}")
    k(f"{pf}:")
    stamp(k, "F1")
    lx = k.label()
    k(f"{lx}:")
    for j in range(4): k(f"buffer_load_dwordx4 v{vA1}, {WS}, s{sT0} offen offset:{j*1024} sc1 lds")
    k(f"s_add_u32 m0, m0, 4096\ns_add_u32 s{sT0}, s{sT0}, 4096\ns_cmp_lt_u32 s{sT0}, s{sT1}\ns_cbranch_scc1 {lx}")
    k(f"v_mov_b32 v{T}, s52\nv_mov_b32 v{U}, 1\nv_mov_b32 v{U+1}, 1\nv_mov_b32 v{U+2}, 1\nv_mov_b32 v{U+3}, 1\ns_waitcnt vmcnt(0)\nds_write_b128 v{T}, {vr(U,4)}\ns_setprio 0")
    stamp(k, "F2")
    k("s_branch L_idle")
    k(f"{n6}:\ns_setprio 0\ns_cmp_eq_u32 s{S_WAVE}, 4\ns_cbranch_scc1 L_dry")
    k(f"s_cmp_lg_u32 s{sFJ}, 63\ns_cbranch_scc1 L_idle\ns_branch L_F")
    k("L_dry:")
    if CFG["dry"]:
        k(f"s_mov_b32 s58, 2\ns_mov_b64 exec, 0\ns_branch L_f2body\nL_dryback:\ns_mov_b64 exec, -1")

def role_F(k):
    T = TT
    sT0, sT1 = 48, 49
    U, V, CF, UR, UI, VR, VI = 24, 40, 56, 104, 120, 136, 152
    sT, sU, sV, sSp = 52, 53, 54, 58
    vA1, vA2, vLu, vLv, vCB = 18, 19, 16, 17, 20
    idle = "L_idle"
    k(f"s_call_b64 {sr(S_RET,2)}, L_task")
    k("L_Ft:")
    k(f"v_lshlrev_b32 v{vA1}, 4, v{vLane}\nv_mov_b32 v{vCB}, {CB}")
    stamp(k, "F3")
    lds_wait(k, vCB, 64, 1, U, sleep=1)
    stamp(k, "F4")
    for q in range(4): k(f"ds_read_b128 {vr(U+4*q,4)}, v{vLu} offset:{q*12288}")
    for q in range(4): k(f"ds_read_b128 {vr(V+4*q,4)}, v{vLv} offset:{q*12288}")
    TW = M20R
    k("L_f2body:")
    k("s_waitcnt lgkmcnt(4)\ns_brev_b32 s57, 1\ns_mov_b32 s56, 0xffff0000")
    xr = L(); xr("s_waitcnt lgkmcnt(0)")
    for i in range(16): xr(f"v_xor_b32 v{V+i}, s57, v{V+i}")
    inter(k, mm2(UR, UI, U, M32R, U, M32I, 4), xr)
    tw = twiddle(UR, UI, U, TW, False)
    inter(k, mm2(VR, VI, V, M32R, V, M32I, 4), tw)
    inter(k, mm2(UR, UI, M32R, U, M32I, U, 4), twiddle(VR, VI, V, TW, False))
    for x in mm2(VR, VI, M32R, V, M32I, V, 4): k(x)
    E = M20R
    lds_wait(k, vCB, 80, 1, E, sleep=1)
    for q in range(4):
        for c in range(2): k(f"ds_read_b128 {vr(CF+16*c+4*q,4)}, v{vA2} offset:{WBK+q*2048+c*64}")
    stamp(k, "fc")
    for i in range(0, 16, 2):
        if i % 4 == 0: k(f"s_waitcnt lgkmcnt({6 - i//2})")
        ar, ai, br, bi, gr, gi, a, b, c_, d_ = [vr(E + 2 * j, 2) for j in range(10)]
        for src, dst in ((CF, E + 4), (CF + 16, E + 12), (CF + 32, E + 16)):
            for d in range(2): k(f"v_lshlrev_b32 v{dst+d}, 16, v{src+i+d}\nv_and_b32 v{dst+2+d}, s56, v{src+i+d}")
        NG1 = " neg_lo:[1,0,0] neg_hi:[1,0,0]"
        k(f"v_pk_add_f32 {gr}, {br}, {a}\nv_pk_add_f32 {gi}, {bi}, {b}\nv_pk_add_f32 {br}, {br}, {a} neg_lo:[0,1] neg_hi:[0,1]\nv_pk_add_f32 {bi}, {bi}, {b} neg_lo:[0,1] neg_hi:[0,1]")
        k(f"v_pk_fma_f32 {ar}, {c_}, {br}, {gr}{NG1}\nv_pk_fma_f32 {ai}, {c_}, {bi}, {gi}{NG1}\nv_pk_fma_f32 {gr}, {c_}, {br}, {gr}\nv_pk_fma_f32 {gi}, {c_}, {bi}, {gi}")
        k(f"v_pk_mul_f32 {br}, {d_}, {br}\nv_pk_mul_f32 {bi}, {d_}, {bi}")
        ur, ui, vr_, vi = vr(UR + i, 2), vr(UI + i, 2), vr(VR + i, 2), vr(VI + i, 2)
        NG = " neg_lo:[1,0,0] neg_hi:[1,0,0]"
        k(f"v_pk_mul_f32 {a}, {ar}, {ur}\nv_pk_mul_f32 {b}, {ar}, {ui}\nv_pk_mul_f32 {c_}, {bi}, {ur}\nv_pk_mul_f32 {d_}, {bi}, {ui}")
        k(f"v_pk_fma_f32 {a}, {ai}, {ui}, {a}{NG}\nv_pk_fma_f32 {b}, {ai}, {ur}, {b}\nv_pk_fma_f32 {c_}, {br}, {ui}, {c_}\nv_pk_fma_f32 {d_}, {br}, {ur}, {d_}{NG}")
        k(f"v_pk_fma_f32 {a}, {bi}, {vr_}, {a}{NG}\nv_pk_fma_f32 {b}, {br}, {vr_}, {b}\nv_pk_fma_f32 {c_}, {gr}, {vr_}, {c_}\nv_pk_fma_f32 {d_}, {gr}, {vi}, {d_}")
        k(f"v_pk_fma_f32 {a}, {br}, {vi}, {a}{NG}\nv_pk_fma_f32 {b}, {bi}, {vi}, {b}{NG}\nv_pk_fma_f32 {c_}, {gi}, {vi}, {c_}{NG}\nv_pk_fma_f32 {d_}, {gi}, {vr_}, {d_}")
        for d in range(2):
            k(f"v_cvt_pk_bf16_f32 v{U+i+d}, v{E+14+d}, v{E+12+d}\nv_cvt_pk_bf16_f32 v{V+i+d}, v{E+18+d}, v{E+16+d}")
    for x in mm2(UI, UR, U, M32R, U, M32I, 4): k(x)
    stamp(k, "fd")
    inter(k, mm2(VI, VR, V, M32R, V, M32I, 4), twiddle(UR, UI, U, TW, True))
    inter(k, mm2(UI, UR, M32R, U, M32I, U, 4), twiddle(VR, VI, V, TW, True))
    k(f"s_mul_i32 s{sU}, s{sT}, {2*Y_S}\ns_cmp_eq_u32 s{sT}, 320\ns_cselect_b32 s{sU}, {Y_S}, s{sU}\ns_add_u32 s{sU}, s{sU}, {Y_OFF}\ns_add_u32 s{sV}, s{sU}, {Y_S}")
    def st4(src, sb, cv):
        o = L()
        for q in range(4):
            for i in range(4 * q, 4 * q + 4): o(cv(i))
            o(f"buffer_store_dwordx4 {vr(src+4*q,4)}, v{vA1}, {WS}, s{sb} offen offset:{q*1024} sc1")
        return o
    sp = k.label(); fin = k.label()
    k(f"s_cmp_lg_u32 s{sSp}, 0\ns_cbranch_scc1 {sp}")
    inter(k, mm2(VI, VR, M32R, V, M32I, V, 4), st4(U, sU, lambda i: f"v_cvt_pk_bf16_f32 v{U+i}, v{UI+i}, v{UR+i}"))
    for x in st4(CF, sV, lambda i: f"v_cvt_pk_bf16_f32 v{CF+i}, -v{VI+i}, v{VR+i}"): k(x)
    k(f"{fin}:")
    stamp(k, "F5")
    k("s_waitcnt vmcnt(0)\ns_barrier")
    stamp(k, "F6")
    k(f"s_cmp_lt_u32 s{S_WAVE}, 4\ns_cbranch_scc1 L_fin")
    k(f"s_call_b64 {sr(S_RET,2)}, L_consts")
    k("s_branch L_fin")
    k(f"{sp}:\ns_nop 3")
    if CFG["dry"]: k(f"s_cmp_eq_u32 s{sSp}, 2\ns_cbranch_scc1 L_dryback")
    for x in mm2(VI, VR, M32R, V, M32I, V, 4): k(x)
    for i in range(16):
        k(f"v_add_f32 v{UR+i}, v{UR+i}, v{VR+i}\nv_sub_f32 v{UI+i}, v{UI+i}, v{VI+i}")
        k(f"v_mul_f32 v{UR+i}, 0.5, v{UR+i}\nv_mul_f32 v{UI+i}, 0.5, v{UI+i}")
    for x in st4(U, sU, lambda i: f"v_cvt_pk_bf16_f32 v{U+i}, v{UI+i}, v{UR+i}"): k(x)
    k(f"s_branch {fin}")
    k(f"{idle}:")
    n7 = k.label()
    k(f"s_cmp_lg_u32 s{S_WAVE}, 7\ns_cbranch_scc1 {n7}")
    k(f"s_lshl_b32 s{sT0}, s{sFJ}, 3\nv_lshlrev_b32 v21, 9, v{vL}\nv_add_u32 v21, s{sT0}, v21\ns_lshl_b32 s{sT0}, s{sFJ}, 9\ns_add_u32 s{sT0}, s{sT0}, 16384\nv_lshlrev_b32 v22, 7, v{vL}\nv_add_u32 v22, s{sT0}, v22")
    k(f"v_cmp_eq_u32 vcc, 0, v{vH}\nv_cndmask_b32 v21, v22, v21, vcc\ns_mov_b32 s{sT0}, {FY}\ns_mov_b32 s56, -1\ns_mov_b32 s57, 15")
    k("s_barrier")
    flag_store(k, 21, f"s{sT0}", PN, "s[56:57]")
    stamp(k, "y0")
    k("s_branch L_fin")
    k(f"{n7}:\ns_barrier")

def role_FIN(k):
    T = TT
    k("L_fin:")
    vYo, vSa, vSb, vPa, vPb, vXa, vXb, PT = 16, 17, 18, 19, 20, 21, 22, 24
    XV, B2, PA, PB, SA, SB, O, E = 26, 36, 40, 52, 56, 60, 62, 72
    YD, DR, DI, PK = 84, 96, 112, 128
    sT0, sY, sRow, sP, sLo, sHi, sRb, sFp = 44, 45, 47, 48, 49, 50, 51, 52
    k("s_nop 7\ns_setprio 0")
    k.srd(SRD_X, P_X, 2621440); k.srd(SRD_OUT, P_OUT, 2621440); k.srd(SRD_B, P_B2, 1280)
    sYl, sSl_ = 53, 54
    k(f"s_lshl_b32 s{sYl}, s{S_ROT}, 2\ns_lshr_b32 s{sYl}, {hex(UTAB)}, s{sYl}\ns_and_b32 s{sYl}, s{sYl}, 7\ns_cmp_eq_u32 s{sYl}, 0\ns_cselect_b32 s{sSl_}, 20480, 0\ns_mul_i32 s{sYl}, s{sYl}, 20480")
    k(f"s_lshr_b32 s{sT0}, s{S_WAVE}, 2\ns_lshl_b32 s{sT0}, s{sT0}, 6\ns_add_u32 s{sT0}, s{sT0}, 512\nv_add_u32 v{T}, s{sT0}, v{vLane}")
    k(f"v_lshlrev_b32 v{vXa}, 1, v0\nv_lshlrev_b32 v{vXb}, 1, v{T}\nv_lshlrev_b32 v{vPa}, 4, v0")
    k(f"s_and_b32 s{sRb}, s{S_WAVE}, 3\ns_lshl_b32 s{sT0}, s{sRb}, 2\nv_lshlrev_b32 v{vPb}, 4, v{T}\nv_add_u32 v{vPb}, s{sT0}, v{vPb}")
    k(f"v_mul_u32_u24 v{T+1}, 3277, v0\nv_lshrrev_b32 v{T+1}, 16, v{T+1}\nv_lshl_add_u32 v{vSa}, v{T+1}, 4, v{vPa}")
    k(f"v_mul_u32_u24 v{T+1}, 3277, v{T}\nv_lshrrev_b32 v{T+1}, 16, v{T+1}\nv_lshl_add_u32 v{vSb}, v{T+1}, 4, v{vPb}\nv_add_u32 v{vSa}, s{sSl_}, v{vSa}\nv_add_u32 v{vSb}, s{sSl_}, v{vSb}")
    k(f"s_lshl_b32 s{sRow}, s{S_QH}, 8\ns_lshl_b32 s{sT0}, s{S_I}, 1\ns_add_u32 s{sRow}, s{sRow}, s{sT0}\ns_mul_i32 s{sRow}, s{sRow}, 1280")
    k(f"s_mul_i32 s{sRb}, s{sRb}, {64*1280}\ns_add_u32 s{sRb}, s{sRb}, s{sRow}")
    k(f"s_mul_i32 s{sP}, s{S_G}, 10240\ns_add_u32 s{sP}, s{sP}, {P_OFF}")
    k(f"s_lshr_b32 s{sFp}, s{S_G}, 2\ns_lshl_b32 s{sFp}, s{sFp}, 11\ns_add_u32 s{sFp}, s{sFp}, {FP}")
    k(f"v_lshlrev_b32 v{T+7}, 7, v{vLane}")
    def xloads():
        xs = sr(SRD_X)
        for r in range(4):
            k(f"s_add_u32 s{sT0}, s{sRow}, {r*64*1280}")
            for b in range(2): k(f"buffer_load_short_d16_hi v{XV+2*r+b}, v{vXa}, {xs}, s{sT0} offen offset:{b*1280}")
        for b in range(2): k(f"buffer_load_short_d16_hi v{XV+8+b}, v{vXb}, {xs}, s{sRb} offen offset:{b*1280}")
        k(f"buffer_load_short_d16_hi v{B2}, v{vXa}, {sr(SRD_B)}, 0 offen\nbuffer_load_short_d16_hi v{B2+1}, v{vXb}, {sr(SRD_B)}, 0 offen")
    lq = k.label()
    k(f"s_cmp_eq_u32 s{S_WAVE}, 7\ns_cbranch_scc1 {lq}")
    xloads()
    k(f"{lq}:")
    nofft = k.label(); join = k.label()
    k(f"s_cmp_lt_u32 s{S_WAVE}, 4\ns_cbranch_scc1 {nofft}")
    k(f"s_lshl_b32 s{sY}, s{S_G}, 4\ns_add_u32 s{sY}, s{sY}, {Y_OFF}\ns_and_b32 s{sLo}, s{S_WAVE}, 3")
    k(f"v_mov_b32 v{YD+10}, 0\nv_mov_b32 v{YD+11}, 0")
    k(f"s_lshl_b32 s{sT0}, s{sLo}, 2\nv_lshlrev_b32 v{T+6}, 4, v{vLane}\nv_add_u32 v{T+6}, s{sT0}, v{T+6}\nv_add_u32 v{T+6}, s{sYl}, v{T+6}")
    k(f"v_mul_u32_u24 v{vYo}, 336, v{vL}\nv_mul_u32_u24 v{T}, 160, v{vH}\nv_add3_u32 v{vYo}, v{vYo}, v{T}, s{sT0}\nv_add_u32 v{vYo}, s{sSl_}, v{vYo}")
    l = k.label()
    k(f"s_cmp_lg_u32 s{S_WAVE}, 7\ns_cbranch_scc1 {l}")
    k(f"v_sub_u32 v{T+1}, 320, v{vL}\nv_cmp_eq_u32 vcc, 1, v{vH}\nv_cndmask_b32 v{T+2}, v{vL}, v{T+1}, vcc\nv_lshl_add_u32 v{T+2}, v{T+2}, 1, v{vH}\nv_mul_u32_u24 v{T+2}, {Y_S}, v{T+2}")
    k(f"v_mov_b32 v{T+3}, {64*Y_S}\nv_mov_b32 v{T+4}, {(-64*Y_S) & 0xffffffff}\nv_cndmask_b32 v{T+3}, v{T+3}, v{T+4}, vcc")
    k(f"v_cmp_ne_u32 vcc, {641*Y_S}, v{T+2}\nv_mov_b32 v{T+4}, {Y_S}\nv_cndmask_b32 v{T+4}, v{T+4}, v{T+2}, vcc")
    k(f"s_lshl_b32 s{sHi}, s2, 7\ns_add_u32 s{sHi}, s{sHi}, {FY+16384}\nv_lshlrev_b32 v{T+5}, 3, v{vLane}")
    poll(k, T + 5, f"s{sHi}", PT, mask=1, sleep=CFG["gsleep"])
    stamp(k, "y1")
    k(f"s_and_b32 s{sHi}, s2, 31\ns_lshl_b32 s{sHi}, s{sHi}, 9\ns_add_u32 s{sHi}, s{sHi}, {FY}")
    poll(k, T + 5, f"s{sHi}", PT, sleep=CFG["psleep"])
    stamp(k, "ya")
    k(f"s_mov_b32 m0, s{sYl}")
    for i in range(10):
        k(f"buffer_load_dwordx4 v{T+4 if i == 0 else T+2}, {WS}, s{sY} offen sc1 lds")
        if i < 9: k(f"v_add_u32 v{T+2}, v{T+2}, v{T+3}\ns_add_u32 m0, m0, 1024")
    xloads()
    k("s_waitcnt vmcnt(12)")
    stamp(k, "yb")
    k(f"{l}:")
    k("s_barrier")
    for i in range(10): k(f"ds_read_b32 v{YD+i}, v{T+6} offset:{i*1024}")
    k("s_waitcnt lgkmcnt(0)")
    for x in mm2(DI, DR, YD, M20R, YD, M20I, 3): k(x)
    for x in twiddle_pk(DR, DI, PK, E, True): k(x)
    for x in mm2(DI, DR, PK, M32R, PK, M32I, 4): k(x)
    for i in range(10):
        k(f"v_cvt_pk_bf16_f32 v{YD+i}, v{DR+i}, v{DI+i}")
        k(f"ds_write_b32 v{vYo}, v{YD+i} offset:{i*16}")
    k(f"s_branch {join}")
    k(f"{nofft}:\ns_barrier")
    k(f"s_cmp_lg_u32 s{S_WAVE}, 0\ns_cbranch_scc1 {join}")
    poll(k, T + 7, f"s{sFp}", PT, mask="0xfff", sleep=2)
    k(f"{join}:")
    stamp(k, "yc")
    k("s_waitcnt lgkmcnt(0)\ns_barrier")
    stamp(k, "yd")
    for kq in range(3):
        k(f"s_add_u32 s{sT0}, s{sP}, {kq*2621440}")
        k(f"buffer_load_dwordx4 {vr(PA+4*kq,4)}, v{vPa}, {WS}, s{sT0} offen sc1")
        k(f"buffer_load_dword v{PB+kq}, v{vPb}, {WS}, s{sT0} offen sc1")
    k(f"s_mov_b32 s{sLo}, 0x00003f80\ns_mov_b32 s{sHi}, 0x3f800000\nv_mov_b32 v{T}, {lit(2048.0*640.0)}")
    k("s_waitcnt vmcnt(6)")
    for j in range(10): k(f"v_mov_b32 v{O+j}, v{B2 + (j >= 8)}")
    k(f"ds_read_b128 {vr(SA,4)}, v{vSa}\nds_read_b32 v{SB}, v{vSb}")
    for kq in range(3):
        k(f"s_waitcnt vmcnt({4-2*kq})")
        if kq == 2: stamp(k, "ye")
        for j in range(10):
            src = PA + 4 * kq + j // 2 if j < 8 else PB + kq
            k(f"v_dot2c_f32_bf16 v{O+j}, s{sHi if j & 1 else sLo}, v{src}")
    for j in range(10): k(f"v_mul_f32 v{E+j}, {lit(-1.4426950408889634)}, v{O+j}")
    for j in range(10): k(f"v_exp_f32 v{E+j}, v{E+j}")
    for j in range(10): k(f"v_fma_f32 v{E+j}, v{E+j}, v{T}, v{T}")
    for j in range(10): k(f"v_rcp_f32 v{E+j}, v{E+j}")
    for j in range(10): k(f"v_mul_f32 v{O+j}, v{O+j}, v{E+j}")
    k("s_waitcnt lgkmcnt(0)")
    os_ = sr(SRD_OUT)
    for p in range(5):
        src = SA + p if p < 4 else SB
        k(f"v_lshlrev_b32 v{E+2*p}, 16, v{src}\nv_and_b32 v{E+2*p+1}, 0xffff0000, v{src}")
    for p in range(5):
        k(f"v_fmac_f32 v{XV+2*p}, v{E+2*p}, v{O+2*p}\nv_fmac_f32 v{XV+2*p+1}, v{E+2*p+1}, v{O+2*p+1}")
        k(f"v_cvt_pk_bf16_f32 v{O+2*p}, v{XV+2*p}, v{XV+2*p+1}")
        if p < 4: k(f"s_add_u32 s{sT0}, s{sRow}, {p*64*1280}")
        so = sT0 if p < 4 else sRb
        va = vXa if p < 4 else vXb
        k(f"buffer_store_short v{O+2*p}, v{va}, {os_}, s{so} offen\nbuffer_store_short_d16_hi v{O+2*p}, v{va}, {os_}, s{so} offen offset:1280")
    stamps_out(k)

def build(path, stamps=None, scrub=False, single=False):
    global STAMPS
    STAMPS = stamps
    k = K(NAME, 256, 512, lds=163840, vgpr=256, sgpr=102)
    k.label = lambda base="L", _c=[0]: (_c.__setitem__(0, _c[0] + 1), "%s_%d" % (base, _c[0]))[1]
    if STAMPS:
        for i in range(1, 8): k("s_mov_b64 s[%d:%d], 0" % (86 + 2 * i, 87 + 2 * i))
    stamp(k, "start")
    k("s_load_dwordx16 s[64:79], s[0:1], 0\ns_load_dwordx4 s[80:83], s[0:1], 64\ns_load_dwordx2 s[84:85], s[0:1], 80")
    k("s_cmp_ge_u32 s2, 256\ns_cbranch_scc1 L_done")
    k(f"s_getpc_b64 {sr(SRD_B,2)}\nL_pc:\ns_sub_u32 s{SRD_B}, s{SRD_B}, L_pc-{NAME}\ns_subb_u32 s{SRD_B+1}, s{SRD_B+1}, 0\ns_and_b32 s{SRD_B+1}, s{SRD_B+1}, 0xffff")
    k(f"s_mov_b32 s{SRD_B+2}, kernel_end-{NAME}\ns_mov_b32 s{SRD_B+3}, 0x00020000\ns_lshr_b32 s{S_I}, s2, 3\ns_and_b32 s44, s{S_I}, 3\ns_lshl_b32 s44, s44, 13\nv_lshlrev_b32 v1, 4, v0")
    k(f"buffer_load_dword v167, v1, {sr(SRD_B)}, s44 offen")
    k(f"v_lshrrev_b32 v1, 6, v0\ns_and_b32 s{S_XCD}, s2, 7\nv_readfirstlane_b32 s{S_WAVE}, v1")
    k(f"v_and_b32 v{vLane}, 63, v0\nv_and_b32 v{vL}, 31, v0\nv_bfe_u32 v{vH}, v0, 5, 1")
    k(f"s_mul_i32 s{S_QH}, s{S_XCD}, 3\ns_and_b32 s{S_QH}, s{S_QH}, 7\ns_lshl_b32 s{S_G}, s{S_QH}, 5\ns_add_u32 s{S_G}, s{S_G}, s{S_I}")
    k(f"s_lshr_b32 s{S_ROT}, s{S_I}, 2\ns_mul_i32 s{S_ROT}, s{S_ROT}, {CFG['rot2']}\ns_lshr_b32 s{S_ROT}, s{S_ROT}, 5\ns_and_b32 s{S_ROT}, s{S_ROT}, 7")
    if "noF" in ABL: k(f"s_cmp_ge_u32 s{S_I}, 24\ns_cbranch_scc1 L_done")
    k(f"v_lshlrev_b32 v8, 2, v{vL}\nv_add_u32 v8, {CB}, v8\nv_mov_b32 v9, 0\nds_write_b32 v8, v9\ns_waitcnt lgkmcnt(0)\ns_barrier")
    if CFG["wsb"]: k(f"s_add_u32 s{P_WS}, s{P_WS}, {CFG['wsb'] << 20}\ns_addc_u32 s{P_WS+1}, s{P_WS+1}, 0")
    k(f"s_and_b32 s{S_W4}, s{S_WAVE}, 3\ns_cmp_lt_u32 s{S_WAVE}, 4\ns_cbranch_scc1 L_lo")
    role_R(k)
    k(f"s_cmp_ge_u32 s{S_I}, 24\ns_cbranch_scc1 L_Fhi")
    role_Gload(k)
    k("L_lo:")
    k(f"s_cmp_ge_u32 s{S_I}, 24\ns_cbranch_scc1 L_Fw")
    role_Gcomp(k)
    k("L_Fw:")
    role_Fw(k)
    k("L_Fhi:")
    role_Fhi(k)
    k("L_F:")
    role_F(k)
    role_FIN(k)
    k("L_done:\ns_endpgm\nkernel_end:")
    k.lines = hz.fix(hz.cap(k.lines, True))
    ks = [k]
    if scrub: ks = [scrub_kernel()] + ks
    write(path, ks, header="GFNet spectral filter x channel-MLP gate, one fused kernel; generated by tools/gen25.py")
    if single:
        s = open(path).read().replace("; @launch kernel=%s " % NAME, "; @launch ")
        open(path, "w").write(s)

def mk(*groups):
    d = {"start": 0}
    for g in groups:
        for i, n in enumerate(g): d[n] = i + 1
    return d
def build_all(v):
    p = "exp/" + v
    build(p + ".s")
    build(p + "_single.s", single=True)
    build(p + "_s1.s", stamps=mk(["R1", "R2", "R3", "R4", "R5", "R6"], ["Gc0", "Gc1", "Gc2", "it1", "it2", "it3"]), scrub=True)
    build(p + "_s2.s", stamps=mk(["Gc2", "it4", "Gc3", "Gc4", "Gc5", "Gc6"], ["F1", "F2", "F3", "F4", "F5", "F6"], ["Gl2", "Gl3", "Gl4", "Gl5"]), scrub=True)
    build(p + "_s3.s", stamps=mk(["Ga", "Gb", "Gd", "Ge", "yd", "ye"], ["ya", "yb"]), scrub=True)

if __name__ == "__main__":
    build_all("v25")
    d = mk(["Gc2", "it3", "Gc3", "Gc4", "cg0", "Gc5"], ["F1", "F2", "F4", "F5", "R5", "R6"], ["Gl2", "Gl3", "Gl4", "Gl5"])
    d2 = mk(["F4", "fc", "fd", "F5", "F6"], ["F1", "F2", "y0", "y1", "ya", "yb"], ["Gc6", "Ga", "cg2", "Gb", "Gd", "Ge"])
    base = dict(CFG)
    import asmlib
    scrub_kernel = lambda: asmlib.scrub_kernel(9216)
    d3 = mk(["Gc2", "it1", "it2", "it3", "Gc5", "Ge"], ["F1", "F2", "F4", "F5", "R6", "yb"])
    d4 = mk(["it3", "Gc5", "Ga", "Gb", "Gd", "Ge"], ["F1", "F2", "F4", "F5", "R6", "yb"])
    base = dict(CFG)
    d5 = mk(["Gc2", "it3", "Gc5", "Gb", "Ge", "yd"], ["R4", "R6", "F1", "F2", "y0", "yb"]); d5["dbg"] = 1
    build("v25_dbg.s", stamps=d5, single=True)
    build("v25_dbgl.s", stamps=d5)
```
